```python
import torch

def _softmax(x, axis=-1):
    return torch.softmax(x, dim=axis)
def _gelu(x):
    return torch.nn.functional.gelu(x, approximate="tanh")
def _silu(x):
    return torch.nn.functional.silu(x)
def _sigmoid(x):
    return torch.sigmoid(x)
def _layernorm(x, axis=-1, eps=1e-5):
    m = x.mean(dim=axis, keepdim=True)
    v = x.var(dim=axis, keepdim=True, unbiased=False)
    return (x - m) / torch.sqrt(v + eps)
def _scatter_add(tgt, idx, src, axis=0):
    return tgt.clone().index_add_(axis, idx, src)
def _segment_sum(src, seg, n):
    out = torch.zeros((n,) + src.shape[1:], dtype=src.dtype)
    return out.index_add_(0, seg, src)
def _pad(x, pw):
    flat = tuple(v for pair in reversed(pw) for v in pair)
    return torch.nn.functional.pad(x, flat)

kernel_name = 'standalone__self_sup_conv_stem_hubert__speech'

def setup_inputs():

    _w = (lambda a: (lambda t: t.to(torch.bfloat16) if t.is_floating_point() else t)(torch.as_tensor(a)))
    B, T, D, K = 2, 4000, 512, 31
    scale = (1.0 / (K * D)) ** 0.5
    return {
        "x": _w((lambda *s: torch.randn(*s, dtype=torch.bfloat16) * 0.05)(B, T, D)),
        "w": _w((lambda *s: torch.randn(*s, dtype=torch.bfloat16) * 0.05)(K, D, D) * scale),
        "b": _w((lambda *s: torch.randn(*s, dtype=torch.bfloat16) * 0.05)(D) * 0.1),
        "gamma": _w(torch.ones((D,), dtype=float)),
        "beta": _w(torch.zeros((D,), dtype=float)),
    }

def reference(x, w, b, gamma, beta):
    B, T, D = x.shape
    K = w.shape[0]
    s = 2
    L = (T - K) // s + 1
    y = torch.einsum('blc,cd->bld', x[:, 0 : s * L : s, :], w[0])
    for i in range(1, K):
        y = y + torch.einsum('blc,cd->bld', x[:, i : i + s * L : s, :], w[i])
    y = y + b[None, None, :]
    mu = y.mean(1, keepdims=True)
    var = ((y - mu) ** 2).mean(1, keepdims=True)
    yn = (y - mu) / torch.sqrt(var + 1e-5)
    yn = yn * gamma[None, None, :] + beta[None, None, :]
    return _gelu(yn)
```

```python
import sys, math
from collections import defaultdict

KN = "standalone__self_sup_conv_stem_hubert__speech_kernel"

ABUF = 35360; ABLK = 2080
BBASE = 70720; BRING = 21760; BSLOT = 4352; BD = 1088; NSLOT = 5
LDS_DUMMY = 157760
ST_OFF = 158784
AB_OFF = 159808
LDS_TOTAL = 160832
WS_HS = 0; WS_XS = 8 << 20; WS_RX = 16 << 20; WS_FL = 24 << 20; WS_ST = (24 << 20) + 65536
WS_STAMP = 32 << 20
WS_BYTES = 64 << 20
OOB = 0x40000000

SX, SWT, SWS, SOUT, SDBG = 4, 8, 12, 16, 20
sB, sG, sRole, sT, sW = 24, 25, 26, 27, 28
sMA, sMA9 = 29, 30
sMB = 32
sXp = 33
sWp = 41
sXsT = 49
sTB, sTA, sHsO = 50, 51, 52
sH = 53
sHst = 57
sXsS, sXsD, sTX = 61, 62, 63
sMask = 64
sOutO, sInvN, sP0, sP1 = 72, 73, 74, 75
sPtrB, sPtrG, sPtrBe = 76, 78, 80
sC = 82
sStamp = 88

vA, vA9, vAT, vAT9 = 1, 2, 3, 4
vBd = 5
vAf, vBe, vBo, vBh, vHs, vHsSt = 9, 10, 11, 12, 13, 14
vXsA, vXsA5, vXsD, vXsD5 = 15, 16, 17, 18
vAtom, vOne, vRed, vRed2, vPW, vRxSt = 19, 20, 21, 22, 23, 24
vLE, vLO0, vLO1, vGE, vGO0, vGO1, vLK, vGK, vLKc, vGKc = 25, 26, 27, 28, 29, 30, 31, 32, 33, 34
vStSt, vStP, vFlSt, vFlP, vSW, vSR, vABw, vABr, vOut, vF3 = 35, 36, 37, 38, 39, 40, 41, 42, 43, 44
vGam, vBet, vBia = 45, 46, 47
AF0, NAF = 48, 18
WF0 = 120
TMP = 152
vKc, vKc2, vPoll, vZero = 248, 249, 250, 251

PH_N = [8, 8, 8, 8, 8, 7, 8, 7] + [8] * 8


def vr(b, n): return f"v[{b}:{b+n-1}]" if n > 1 else f"v{b}"
def ar(b, n): return f"a[{b}:{b+n-1}]" if n > 1 else f"a{b}"
def R(bank, b, n): return [(bank, b + i) for i in range(n)]


class Gen:
    def __init__(s):
        s.out = []
        s.vi = s.vd = s.li = s.ld = 0
        s.pend = {}
        s.tag = {}
        s.ev = {}
        s.nwait = 0
        s.cur = -1
        s.issue_gap = {}
        s.mind = {}

    def e(s, t): s.out.append("  " + t)

    def wait(s, vm=None, lg=None):
        p = []
        if vm is not None and vm > s.vd:
            n = s.vi - vm
            if n > 63: n = 63
            p.append(f"vmcnt({n})"); s.vd = max(s.vd, s.vi - n)
        if lg is not None and lg > s.ld:
            n = s.li - lg
            if n > 15: n = 15
            p.append(f"lgkmcnt({n})"); s.ld = max(s.ld, s.li - n)
        if p:
            s.e("s_waitcnt " + " ".join(p)); s.nwait += 1

    def need(s, regs, tag=None, what=""):
        vm = lg = None
        for r in regs:
            if tag is not None:
                assert s.tag.get(r) == tag, f"content mismatch {r}: have {s.tag.get(r)} want {tag} ({what}) at gap {s.cur}"
            pd = s.pend.get(r)
            if pd:
                k, i = pd
                if k == 'vm': vm = max(vm or 0, i)
                else: lg = max(lg or 0, i)
                d = s.cur - s.issue_gap[(k, i)]
                key = tag[0] if isinstance(tag, tuple) else tag
                if (k == 'vm' and i > s.vd) or (k == 'lg' and i > s.ld):
                    s.mind[key] = min(s.mind.get(key, 10**9), d)
                del s.pend[r]
        s.wait(vm, lg)

    def vm(s, t, dst=None, tag=None, ev=None, reads=None, rtag=None):
        if reads: s.need(reads, rtag, t)
        s.e(t); s.vi += 1; s.issue_gap[('vm', s.vi)] = s.cur
        if dst:
            for r in dst:
                s.pend[r] = ('vm', s.vi); s.tag[r] = tag
        if ev: s.ev[ev] = s.vi
        return s.vi

    def lg(s, t, dst=None, tag=None, ev=None, reads=None, rtag=None):
        if reads: s.need(reads, rtag, t)
        s.e(t); s.li += 1; s.issue_gap[('lg', s.li)] = s.cur
        if dst:
            for r in dst:
                s.pend[r] = ('lg', s.li); s.tag[r] = tag
        if ev: s.ev[ev] = s.li
        return s.li

    def valu(s, t, reads=(), writes=(), wtag=None):
        for regs, tag in reads: s.need(regs, tag, t)
        s.e(t)
        for r in writes:
            assert r not in s.pend, f"VALU write over pending load {r} {t}"
            s.tag[r] = wtag


def generate(opt):
    g = Gen()
    e = g.e
    stamps = opt.get("stamps", False)
    SP_UV = opt.get("sp_uv", 5); SP_T = opt.get("sp_t", 4)
    CAP = opt.get("cap", 2)
    TSC = opt.get("tsc", "sc1")
    P0 = []; SL = []; x = 0
    for i, n in enumerate(PH_N):
        P0.append(x); sl = 32 if i < 8 else 16; SL.append(sl); x += n * sl
    NM = x
    steps = []
    for i, n in enumerate(PH_N):
        for m in range(n): steps.append((i, m, P0[i] + m * SL[i]))
    NUV = sum(PH_N[:8])
    bar = [P0[i] + (PH_N[i] - 2) * SL[i] for i in range(16)]
    gaps = defaultdict(list)

    def at(gp, fn): gaps[gp].append(fn)

    def spread(ops, start, stride=1, cap=CAP, limit=None):
        cur = start; last = start
        for fn in ops:
            while len(gaps[cur]) >= cap: cur += 1
            gaps[cur].append(fn); last = cur
            cur += stride if stride > 0 else 0
        if limit is not None: assert last < limit, f"spread overflow {last} >= {limit}"
        return last

    nst = [0]
    def stamp():
        k = nst[0]; nst[0] += 1
        assert sStamp + 4 + 2 * k + 1 <= 101
        e(f"s_memtime s[{sStamp+4+2*k}:{sStamp+5+2*k}]")

    e("s_cmp_ge_u32 s2, 256")
    e("s_cbranch_scc1 L_end")
    e("s_load_dwordx4 s[36:39], s[0:1], 0")
    e(f"s_load_dwordx4 s[{sPtrB}:{sPtrB+3}], s[0:1], 16")
    e(f"s_load_dwordx2 s[{sPtrBe}:{sPtrBe+1}], s[0:1], 32")
    e("s_load_dwordx2 s[40:41], s[0:1], 40")
    e("s_load_dwordx4 s[44:47], s[0:1], 48")
    if stamps:
        e(f"s_memtime s[{sStamp}:{sStamp+1}]"); e(f"s_memrealtime s[{sStamp+2}:{sStamp+3}]")
    T0, T1, T2, T3, T4, T5 = 152, 153, 154, 155, 156, 157
    LN, RR, QQ = 158, 159, 160
    e(f"v_lshrrev_b32 v{T0}, 6, v0")
    e(f"v_and_b32 v{LN}, 63, v0")
    e(f"v_readfirstlane_b32 s{sW}, v{T0}")
    e("s_and_b32 s3, s2, 7")
    e(f"s_and_b32 s{sB}, s3, 1")
    e(f"s_and_b32 s{sG}, s3, 6")
    e("s_bfe_u32 s3, s2, 0x10003")
    e(f"s_add_u32 s{sG}, s{sG}, s3")
    e(f"s_bfe_u32 s{sRole}, s2, 0x10004")
    e(f"s_lshr_b32 s{sT}, s2, 5")
    e(f"v_and_b32 v{RR}, 15, v0")
    e(f"v_lshrrev_b32 v{QQ}, 4, v{LN}")
    e(f"s_lshl_b32 s3, s{sW}, 14")
    e(f"v_lshlrev_b32 v{T0}, 12, v{QQ}")
    e(f"v_lshl_add_u32 v{T0}, v{RR}, 4, v{T0}")
    e(f"v_add_u32 v{vA}, s3, v{T0}")
    e(f"s_lshr_b32 s3, s{sW}, 1")
    e(f"s_lshl_b32 s{sP0}, s3, 30")
    e(f"v_add_u32 v{vA9}, s{sP0}, v{vA}")
    e(f"s_mul_i32 s{sMA}, s3, {ABLK}")
    e(f"s_and_b32 s{sP1}, s{sW}, 1")
    e(f"s_lshl_b32 s{sP1}, s{sP1}, 10")
    e(f"s_add_u32 s{sMA}, s{sMA}, s{sP1}")
    e(f"s_add_u32 s{sMA9}, s{sMA}, {8*4160}")
    e(f"s_add_u32 s{sMA9+1}, s{sMA}, {8*4160+ABUF}")
    e("s_cmp_lg_u32 s3, 0")
    e(f"s_cselect_b32 s{sMA9}, {LDS_DUMMY}, s{sMA9}")
    e(f"s_cselect_b32 s{sMA9+1}, {LDS_DUMMY}, s{sMA9+1}")
    e(f"s_mul_i32 s{sMB}, s{sW}, {BRING}")
    e(f"s_add_u32 s{sMB}, s{sMB}, {BBASE}")
    e(f"v_lshrrev_b32 v{T0}, 3, v{LN}")
    e(f"v_and_b32 v{T1}, 7, v0")
    e(f"v_and_b32 v{T2}, 1, v{QQ}")
    e(f"v_lshlrev_b32 v{T2}, 1, v{T2}")
    e(f"v_xor_b32 v{T1}, v{T1}, v{T2}")
    e(f"s_lshl_b32 s3, s{sRole}, 2")
    e(f"v_xor_b32 v{T1}, s3, v{T1}")
    e(f"v_lshlrev_b32 v{T1}, 4, v{T1}")
    e(f"v_lshl_add_u32 v{T1}, v{T0}, 10, v{T1}")
    e(f"s_lshl_b32 s3, s{sW}, 15")
    e(f"s_lshl_b32 s{sP1}, s{sG}, 7")
    e(f"s_add_u32 s3, s3, s{sP1}")
    e(f"v_add_u32 v{vBd}, s3, v{T1}")
    for d in range(1, 4): e(f"v_add_u32 v{vBd+d}, {8192*d}, v{vBd}")
    e("s_waitcnt lgkmcnt(0)")
    for (srd, p, n) in ((SX, 36, 8192000), (SWT, 38, 16252928), (SWS, 46, WS_BYTES), (SOUT, 40, 0), (SDBG, 44, 256)):
        e(f"s_mov_b32 s{srd}, s{p}"); e(f"s_and_b32 s{srd+1}, s{p+1}, 0xffff")
        if n: e(f"s_mov_b32 s{srd+2}, {n}")
        e(f"s_mov_b32 s{srd+3}, 0x20000")
    e(f"s_mul_i32 s3, s{sB}, 4096000")
    e(f"s_mul_i32 s{sP1}, s{sT}, {127*4096}")
    e(f"s_add_u32 s{sTX}, s3, s{sP1}")
    for i in range(8):
        if i % 2 == 0:
            e(f"s_lshl_b32 s3, s{sRole}, 1")
            e(f"s_xor_b32 s3, s3, {i>>1}")
            e(f"s_lshl_b32 s{sP1}, s3, 8")
            e(f"s_add_u32 s{sXp+i+1}, s{sTX}, s{sP1}")
            e(f"s_lshl_b32 s{sWp+i+1}, s3, 17")
            e(f"s_lshl_b32 s3, s{sRole}, 11")
            e(f"s_add_u32 s{sXp+i}, s{sXp+i+1}, s3")
            e(f"s_lshl_b32 s3, s{sRole}, 20")
            e(f"s_add_u32 s{sWp+i}, s{sWp+i+1}, s3")
        else:
            c = 1 if i < 4 else 3
            e(f"s_add_u32 s{sXp+i}, s{sXp+i}, {c*1024}")
            e(f"s_add_u32 s{sWp+i}, s{sWp+i}, {c*524288}")

    def a_dma_ops(i, n):
        buf = i & 1
        pre = []
        if n < 8: pre.append(lambda: e(f"s_add_u32 m0, s{sMA}, {buf*ABUF + n*4160}"))
        else: pre.append(lambda: e(f"s_mov_b32 m0, s{sMA9+buf}"))
        if i < 8:
            pre.append(lambda: e(f"s_add_u32 s{sTA}, s{sXp+i}, {n*65536}"))
            v = vA if n < 8 else vA9
            op = lambda: g.vm(f"buffer_load_dwordx4 v{v}, s[{SX}:{SX+3}], s{sTA} offen lds", ev=('A', i, n))
        else:
            pre.append(lambda: e(f"s_add_u32 s{sTA}, s{sXsT}, {(i-8)*34816 + n*4096}"))
            v = vAT if n < 8 else vAT9
            op = lambda: g.vm(f"buffer_load_dwordx4 v{v}, s[{SWS}:{SWS+3}], s{sTA} offen {TSC} lds", ev=('A', i, n))
        return pre, op

    HPOS = opt.get("hpos", [7, 9, 13, 15])
    items = []
    for s_ in range(NUV):
        items.append(('B', s_))
        for h, ps in enumerate(HPOS):
            if ps == s_ - 1: items.append(('H', h))
    slot_of = {it: n % NSLOT for n, it in enumerate(items)}

    def b_dma_ops(it, d):
        sl = slot_of[it]
        pre = [lambda: e(f"s_add_u32 m0, s{sMB}, {sl*BSLOT + d*BD}")]
        if it[0] == 'B':
            i, m, _ = steps[it[1]]
            if d == 0: pre.append(lambda: e(f"s_add_u32 s{sTB}, s{sWp+i}, {m*2097152}"))
            so = sTB
        else:
            so = sH + it[1]
        op = lambda: g.vm(f"buffer_load_dwordx4 v{vBd+d}, s[{SWT}:{SWT+3}], s{so} offen lds", ev=(it, d))
        return pre, op

    def emit_dma(pre, op):
        for p in pre: p()
        if len(pre) < 2: e("s_nop 0")
        op()

    for n in range(9): emit_dma(*a_dma_ops(0, n))
    for it in items[:NSLOT]:
        for d in range(4): emit_dma(*b_dma_ops(it, d))
    for n in range(9): emit_dma(*a_dma_ops(1, n))

    e(f"v_mov_b32 v{vZero}, 0")
    e(f"v_mov_b32 v{vOne}, 1")
    NT, MT, PART = 89 if False else sHst, sHst + 1, sHst + 2
    e(f"s_lshl_b32 s{NT}, s{sG}, 1"); e(f"s_add_u32 s{NT}, s{NT}, s{sRole}")
    e(f"s_lshl_b32 s{MT}, s{sB}, 3"); e(f"s_add_u32 s{MT}, s{MT}, s{sT}")
    e(f"s_xor_b32 s{PART}, s2, 16")
    e(f"s_lshl_b32 s3, s{sW}, 10")
    e(f"v_lshlrev_b32 v{T5}, 4, v{LN}")
    e(f"v_add_u32 v{vAT}, s3, v{T5}")
    e(f"v_add_u32 v{vAT9}, s{sP0}, v{vAT}")
    e(f"s_mul_i32 s{sXsT}, s{MT}, 278528"); e(f"s_add_u32 s{sXsT}, s{sXsT}, {WS_XS}")
    e(f"v_mul_u32_u24 v{T0}, {ABLK}, v{RR}")
    e(f"v_lshl_add_u32 v{T0}, v{QQ}, 4, v{T0}")
    e(f"s_lshl_b32 s3, s{sW}, 6")
    e(f"v_add_u32 v{vAf}, s3, v{T0}")
    e(f"v_mul_u32_u24 v{T0}, {BD}, v{QQ}")
    e(f"v_bfe_u32 v{T1}, v0, 2, 2")
    e(f"v_lshl_add_u32 v{T0}, v{T1}, 7, v{T0}")
    e(f"v_add_u32 v{T0}, s{sMB}, v{T0}")
    e(f"v_and_b32 v{T1}, 3, v0")
    e(f"v_bfe_u32 v{T2}, v0, 3, 1")
    e(f"v_lshl_add_u32 v{T3}, v{T1}, 3, v{T0}")
    e(f"v_lshlrev_b32 v{T4}, 5, v{T2}")
    e(f"v_add_u32 v{vBe}, v{T3}, v{T4}")
    e(f"v_sub_u32 v{vBo}, v{T3}, v{T4}")
    e(f"v_lshlrev_b32 v{T2}, 1, v{T2}")
    e(f"v_xor_b32 v{T1}, v{T1}, v{T2}")
    e(f"v_lshl_add_u32 v{vBh}, v{T1}, 4, v{T0}")
    e(f"s_lshl_b32 s3, s{sW}, 11")
    e(f"v_add_u32 v{T0}, s3, v{T5}")
    e(f"s_lshl_b32 s3, s{NT}, 19")
    e(f"v_add_u32 v{vHs}, s3, v{T0}")
    e(f"s_lshl_b32 s3, s{sB}, 18")
    e(f"s_lshl_b32 s{sP1}, s{sRole}, 17"); e(f"s_add_u32 s3, s3, s{sP1}")
    e(f"s_lshl_b32 s{sP1}, s{sT}, 13"); e(f"s_add_u32 s3, s3, s{sP1}")
    e(f"s_lshl_b32 s{sP1}, s{sG}, 20"); e(f"s_add_u32 s3, s3, s{sP1}")
    e(f"v_add_u32 v{vHsSt}, s3, v{T0}")
    e(f"s_mov_b32 s{sHsO}, 0")
    e(f"s_and_b32 s3, s{sB}, s{sRole}"); e("s_lshl_b32 s3, s3, 1")
    e(f"s_lshl_b32 s{sP1}, s{sT}, 2"); e(f"s_add_u32 s{sP1}, s{sP1}, s{sB}")
    e(f"s_sub_u32 s{sP1}, s{sP1}, s3")
    e(f"s_add_u32 s3, s{sP1}, 2")
    e(f"s_lshl_b32 s{sH+1}, s3, 19")
    e(f"s_lshl_b32 s{sH}, s{sP1}, 19")
    e(f"s_cmp_lt_i32 s{sP1}, 0")
    e(f"s_cselect_b32 s{sH}, {OOB}, s{sH}")
    e(f"s_lshl_b32 s3, s{sRole}, 18")
    e(f"s_add_u32 s{sH}, s{sH}, s3"); e(f"s_add_u32 s{sH+1}, s{sH+1}, s3")
    e(f"s_add_u32 s{sH+2}, s{sH}, 131072"); e(f"s_add_u32 s{sH+3}, s{sH+1}, 131072")
    e(f"v_lshrrev_b32 v{T0}, 3, v{LN}")
    e(f"s_lshl_b32 s3, s{sW}, 3")
    e(f"v_add_u32 v{T0}, s3, v{T0}")
    e(f"v_and_b32 v{T1}, 7, v0")
    e(f"v_lshlrev_b32 v{T1}, 4, v{T1}")
    e(f"v_lshl_add_u32 v{vXsA}, v{T0}, 12, v{T1}")
    e(f"v_lshl_add_u32 v{vXsD}, v{T0}, 8, v{T1}")
    e(f"s_cmp_lg_u32 s{sW}, 0"); e(f"s_cselect_b32 s3, {OOB}, 0")
    e(f"v_add_u32 v{vXsA5}, s3, v{vXsA}"); e(f"v_add_u32 v{vXsD5}, s3, v{vXsD}")
    e(f"s_lshr_b32 s3, s{sG}, 2"); e(f"s_and_b32 s3, s3, s{sRole}"); e("s_lshl_b32 s3, s3, 1")
    e(f"s_add_u32 s{sP1}, s{sRole}, 2"); e(f"s_sub_u32 s{sP1}, s{sP1}, s3"); e(f"s_lshl_b32 s{sP1}, s{sP1}, 10")
    e(f"s_add_u32 s{sXsS}, s{sTX}, s{sP1}")
    e(f"s_lshl_b32 s3, s{sG}, 7"); e(f"s_add_u32 s{sXsS}, s{sXsS}, s3")
    e(f"s_lshl_b32 s3, s{sRole}, 2"); e(f"s_lshr_b32 s{sP1}, s{sG}, 1"); e(f"s_add_u32 s3, s3, s{sP1}")
    e(f"s_mul_i32 s3, s3, 34816"); e(f"s_add_u32 s{sXsD}, s{sXsT}, s3")
    e(f"s_and_b32 s3, s{sG}, 1"); e("s_lshl_b32 s3, s3, 7"); e(f"s_add_u32 s{sXsD}, s{sXsD}, s3")
    e(f"v_add_u32 v{vPW}, s{sMB}, v{T5}")
    e(f"s_lshl_b32 s3, s{sW}, 12"); e(f"s_add_u32 s{sP1}, s3, {BBASE}")
    e(f"v_add_u32 v{vRed}, s{sP1}, v{T5}")
    e(f"v_add_u32 v{vRed2}, {2*BRING}, v{vRed}")
    e(f"s_lshl_b32 s{sP1}, s2, 14"); e(f"s_add_u32 s{sP1}, s{sP1}, s3"); e(f"s_add_u32 s{sP1}, s{sP1}, {WS_RX}")
    e(f"v_add_u32 v{vRxSt}, s{sP1}, v{T5}")
    e(f"v_lshlrev_b32 v{T0}, 9, v{QQ}")
    e(f"v_lshl_add_u32 v{T1}, v{RR}, 4, v{T0}")
    e(f"s_add_u32 s{sP1}, s{sMB}, 16384")
    e(f"v_add_u32 v{vLE}, s{sP1}, v{T1}")
    e(f"v_add_u32 v{vLK}, {BBASE+16384}, v{T0}")
    e(f"s_lshl_b32 s{sP1}, s{PART}, 14"); e(f"s_add_u32 s{sP1}, s{sP1}, {WS_RX}")
    e(f"v_add_u32 v{vGK}, s{sP1}, v{T0}")
    e(f"v_and_b32 v{T2}, 31, v0")
    e(f"v_lshrrev_b32 v{T3}, 2, v{T2}"); e(f"v_lshlrev_b32 v{T3}, 8, v{T3}")
    e(f"v_and_b32 v{T4}, 3, v0"); e(f"v_lshl_add_u32 v{T3}, v{T4}, 2, v{T3}")
    e(f"v_add_u32 v{vGKc}, s{sP1}, v{T3}")
    e(f"v_add_u32 v{vLKc}, {BBASE+16384}, v{T3}")
    e(f"s_add_u32 s{sP1}, s{sP1}, s3")
    e(f"v_add_u32 v{vGE}, s{sP1}, v{T1}")
    e(f"s_cmp_lt_u32 s{sW}, 3")
    e(f"s_mov_b32 s3, {(-3*BRING+16) & 0xffffffff}"); e(f"s_mov_b32 s{sP1}, {(-12288+16) & 0xffffffff}")
    e(f"s_cselect_b32 s3, {BRING}, s3")
    e(f"s_cselect_b32 s{sP1}, 4096, s{sP1}")
    e(f"s_cmp_eq_u32 s{sRole}, 0")
    e(f"s_cselect_b32 s3, s3, 2048")
    e(f"s_cselect_b32 s{sP1}, 2048, s{sP1}")
    e(f"s_cselect_b32 s{sP0}, 2048, 0")
    e(f"v_add_u32 v{vLO1}, s3, v{vLE}"); e(f"v_add_u32 v{vGO1}, s{sP1}, v{vGE}"); e(f"v_add_u32 v{vLO0}, s{sP0}, v{vLE}")
    e(f"s_cselect_b32 s{sP0}, 0, 2048")
    e(f"v_add_u32 v{vGO0}, s{sP0}, v{vGE}")
    e(f"s_lshl_b32 s3, s{sB}, 4"); e(f"s_add_u32 s3, s3, s{NT}"); e("s_lshl_b32 s3, s3, 11"); e(f"s_add_u32 s3, s3, {WS_ST}")
    e(f"v_lshlrev_b32 v{T3}, 3, v{T2}")
    e(f"v_bfe_u32 v{T4}, v0, 5, 1")
    e(f"v_lshl_add_u32 v{T1}, v{T4}, 10, v{T3}")
    e(f"v_add_u32 v{vStP}, s3, v{T1}")
    e(f"s_lshl_b32 s{sP1}, s{sT}, 8"); e(f"s_add_u32 s3, s3, s{sP1}")
    e(f"v_add_u32 v{T3}, s3, v{T3}")
    e(f"v_mov_b32 v{T1}, {OOB}")
    e("v_cmp_gt_u32 vcc, 32, v0")
    e(f"s_lshl_b32 s3, s2, 7"); e(f"s_add_u32 s3, s3, {WS_FL}")
    e(f"v_cndmask_b32 v{vStSt}, v{T1}, v{T3}, vcc")
    e(f"v_mov_b32 v{T3}, s3")
    e("v_cmp_eq_u32 vcc, 0, v0")
    e(f"s_lshl_b32 s3, s{PART}, 7"); e(f"s_add_u32 s3, s3, {WS_FL}")
    e(f"v_cndmask_b32 v{vFlSt}, v{T1}, v{T3}, vcc")
    e(f"v_cndmask_b32 v{vAtom}, v{T1}, v{vZero}, vcc")
    e(f"v_mov_b32 v{vFlP}, s3")
    f254 = "0x%08x" % f2u(254.0 / 1985.0); f207 = "0x%08x" % f2u(207.0 / 1985.0)
    e(f"v_cmp_eq_u32 vcc, 1, v{T4}")
    e(f"v_mov_b32 v{T1}, {f254}"); e(f"v_mov_b32 v{T3}, {f207}")
    e(f"v_cndmask_b32 v{vF3}, v{T1}, v{T3}, vcc")
    e(f"s_lshl_b32 s3, s{sW}, 8")
    e(f"v_lshrrev_b32 v{T1}, 2, v{RR}"); e(f"v_lshlrev_b32 v{T1}, 4, v{T1}")
    e(f"v_lshl_add_u32 v{T1}, v{QQ}, 6, v{T1}")
    e(f"s_add_u32 s{sP1}, s3, {ST_OFF}")
    e(f"v_add_u32 v{vSW}, s{sP1}, v{T1}")
    e(f"v_lshrrev_b32 v{T1}, 3, v{T2}"); e(f"v_lshlrev_b32 v{T1}, 6, v{T1}")
    e(f"v_and_b32 v{T3}, 7, v0"); e(f"v_lshl_add_u32 v{T1}, v{T3}, 2, v{T1}")
    e(f"v_add_u32 v{vSR}, {ST_OFF}, v{T1}")
    e(f"s_add_u32 s{sP1}, s3, {AB_OFF}")
    e(f"v_lshlrev_b32 v{T1}, 2, v{T2}"); e(f"v_add_u32 v{vABw}, s{sP1}, v{T1}")
    e(f"v_lshlrev_b32 v{T1}, 5, v{QQ}"); e(f"v_add_u32 v{vABr}, s{sP1}, v{T1}")
    e(f"s_lshl_b32 s3, s{sW}, 2")
    e(f"v_lshlrev_b32 v{T1}, 4, v{RR}"); e(f"v_add_u32 v{T1}, s3, v{T1}")
    e(f"v_lshlrev_b32 v{T3}, 4, v{QQ}"); e(f"v_lshl_add_u32 v{vOut}, v{T1}, 10, v{T3}")
    e(f"s_cmp_eq_u32 s{sT}, 7")
    e(f"s_mov_b32 s{sP1}, 254"); e(f"s_mov_b32 s{sInvN}, 0x{f2u(1.0/254):08x}")
    e(f"s_cselect_b32 s{sP1}, 207, s{sP1}")
    e(f"s_cselect_b32 s{sInvN}, 0x{f2u(1.0/207):08x}, s{sInvN}")
    for k in range(4):
        e(f"v_add_u32 v{T3}, {k}, v{T1}")
        e(f"v_cmp_gt_u32 s[{sMask+2*k}:{sMask+2*k+1}], s{sP1}, v{T3}")
    e(f"s_mul_i32 s3, s{sB}, 1985"); e(f"s_mul_i32 s{sP0}, s{sT}, 254"); e(f"s_add_u32 s3, s3, s{sP0}")
    e(f"s_add_u32 s{sP1}, s{sP1}, s3"); e(f"s_lshl_b32 s{SOUT+2}, s{sP1}, 10")
    e(f"s_lshl_b32 s3, s3, 10"); e(f"s_lshl_b32 s{sP0}, s{NT}, 6"); e(f"s_add_u32 s{sOutO}, s3, s{sP0}")
    e(f"v_lshlrev_b32 v{T1}, 1, v{T2}"); e(f"v_add_u32 v{T1}, s{sP0}, v{T1}")
    g.vm(f"global_load_ushort v{vBia}, v{T1}, s[{sPtrB}:{sPtrB+1}]", dst=R('v', vBia, 1), tag='bia')
    g.vm(f"global_load_ushort v{vGam}, v{T1}, s[{sPtrG}:{sPtrG+1}]", dst=R('v', vGam, 1), tag='gam')
    g.vm(f"global_load_ushort v{vBet}, v{T1}, s[{sPtrBe}:{sPtrBe+1}]", dst=R('v', vBet, 1), tag='bet')
    e(f"s_lshl_b32 s3, s{sRole}, 19")
    e(f"s_xor_b32 s{sP1}, s3, {1<<19}")
    e(f"s_mov_b32 s{sHst}, s3"); e(f"s_mov_b32 s{sHst+1}, s{sP1}")
    e(f"s_add_u32 s{sHst+2}, s3, 65536"); e(f"s_add_u32 s{sHst+3}, s{sP1}, 65536")
    e(f"v_mov_b32 v{T0}, -1"); e(f"v_mov_b32 v{T1}, -1")
    g.vm(f"buffer_store_dwordx2 v[{T0}:{T1}], v{vStSt}, s[{SWS}:{SWS+3}], 0 offen sc1")
    g.vm(f"buffer_store_dword v{vZero}, v{vFlSt}, s[{SWS}:{SWS+3}], 0 offen sc1", ev='clear')
    c0 = -2.0 * math.log2(math.e) * math.sqrt(2.0 / math.pi); c1 = c0 * 0.044715
    e(f"s_mov_b32 s{sC}, 0x{f2u(c1):08x}"); e(f"s_mov_b32 s{sC+1}, 0x{f2u(c1):08x}")
    e(f"s_mov_b32 s{sC+2}, 1.0"); e(f"s_mov_b32 s{sC+3}, 1.0")
    e(f"s_mov_b32 s{sC+4}, {f254}"); e(f"s_mov_b32 s{sC+5}, 0x{f2u(1.0/1985):08x}")

    free_af = list(range(NAF)); af_slot = {}
    def af_read(i, sp):
        def fn():
            assert free_af, "A frag pool exhausted"
            k = free_af.pop(0); af_slot[(i, sp)] = k
            b = AF0 + 4 * k
            off = (i & 1) * ABUF + (sp >> 3) * ABLK + (sp & 7) * 256
            g.lg(f"ds_read_b128 {vr(b,4)}, v{vAf} offset:{off}", dst=R('v', b, 4), tag=('F', i, sp), ev=('Fr', i, sp))
        return fn
    def tr_reads(it):
        ops = []
        sl = slot_of[it]
        for cb in range(4):
            for t in range(2):
                if it[0] == 'B':
                    b = WF0 + 16 * (it[1] & 1) + 4 * cb + 2 * t
                    v = vBe if cb % 2 == 0 else vBo
                    off = sl * BSLOT + t * 512 + cb * 32
                    tag = ('W', it[1], cb)
                else:
                    b = TMP + 16 * (it[1] & 1) + 4 * cb + 2 * t
                    v = vBh
                    off = sl * BSLOT + t * 512 + (cb >> 1) * 64 + (cb & 1) * 8
                    tag = ('Hf', it[1], cb)
                ops.append(lambda b=b, v=v, off=off, tag=tag: g.lg(f"ds_read_b64_tr_b16 {vr(b,2)}, v{v} offset:{off}", dst=R('v', b, 2), tag=tag, ev=('Tr', it)))
        return ops
    freed = {}
    for s_ in range(NUV - 1):
        g0 = steps[s_][2]
        it = ('B', s_ + 1)
        at(g0, lambda it=it: g.wait(vm=g.ev[(it, 3)]))
        for k, fn in enumerate(tr_reads(it)): at(g0 + 1 + k, fn)
        at(g0 + 13, lambda it=it: g.wait(lg=g.ev[('Tr', it)]))
        freed[it] = g0 + 13
        for h, ps in enumerate(HPOS):
            if ps == s_:
                it = ('H', h)
                at(g0 + 14, lambda it=it: g.wait(vm=g.ev[(it, 3)]))
                for k, fn in enumerate(tr_reads(it)): at(g0 + 15 + k, fn)
                at(g0 + 28, lambda it=it: g.wait(lg=g.ev[('Tr', it)]))
                freed[it] = g0 + 28
    freed[('B', 0)] = -1
    bar_extra_vm = defaultdict(list); bar_extra_lg = defaultdict(list)
    def barrier(i):
        def fn():
            vm = [g.ev[('A', i + 1, 8)]] if i < 15 else []
            vm += [g.ev[k] for k in bar_extra_vm[i]]
            lg = [g.ev[('Fr', i, PH_N[i] + 6)]] + [g.ev[k] for k in bar_extra_lg[i]]
            g.wait(vm=max(vm) if vm else None, lg=max(lg))
            e("s_barrier")
            if stamps and i in opt.get("barstamps", ()): stamp()
        return fn
    for i in range(15):
        gaps[bar[i]].insert(0, barrier(i))
    for i in range(16):
        n = PH_N[i]; sl = SL[i]
        k = n - 1
        span = (n - 2) * sl - 12
        for u in range(k):
            gp = P0[i] + (9 if sl == 32 else 1) + (u * span) // k
            spread([af_read(i, 8 + u)], gp, limit=bar[i] - 4)
        if i < 15:
            for u in range(8):
                gp = bar[i] + 9 * (sl == 32) + 1 + (u * (2 * sl - 18)) // 8
                spread([af_read(i + 1, u)], gp, limit=P0[i + 1] - 4)

    vq = []
    for n_, it in enumerate(items):
        if n_ < NSLOT: continue
        prev = items[n_ - NSLOT]
        s_need = it[1] - 1 if it[0] == 'B' else HPOS[it[1]]
        dl = steps[s_need][2] + (14 if it[0] == 'H' else 0)
        for d in range(4):
            pre, op = b_dma_ops(it, d)
            vq.append((freed[prev] + 1 + len(pre), dl + d * 0.1, pre, op, 'B'))
    for i in range(2, 16):
        for n in range(9):
            pre, op = a_dma_ops(i, n)
            vq.append((bar[i - 2] + 1 + len(pre), bar[i - 1] - 400 + n * 0.1 if i < 8 + 1 else bar[i - 1] - 60 + n * 0.1, pre, op))
    NR = 8
    poll1_chk = bar[6] - 8
    for ts in range(64):
        st = NUV + ts
        if ts >= NR - 1:
            ea = steps[st - (NR - 1)][2]
        else:
            ea = max(poll1_chk + 2, steps[NUV - 1][2] - (NR - 1 - ts) * 16 - 64)
        for cb in range(2):
            b = 192 + 8 * (ts % NR) + 4 * cb
            pre = []
            if cb == 0 and ts > 0: pre.append(lambda: e(f"s_add_u32 s{sHsO}, s{sHsO}, 8192"))
            op = lambda b=b, ts=ts, cb=cb: g.vm(f"buffer_load_dwordx4 {ar(b,4)}, v{vHs}, s[{SWS}:{SWS+3}], s{sHsO} offen offset:{cb*1024} {TSC}", dst=R('a', b, 4), tag=('Hs', ts, cb))
            vq.append((ea + len(pre), steps[st][2] + cb * 0.1, pre, op, 'Hs'))

    XA = TMP + 32
    TT = TMP + 72
    xs_start = steps[opt.get("xs_load", 1)][2]
    for n in range(5):
        for ab in range(2):
            b = XA + 8 * n + 4 * ab
            v = vXsA if n < 4 else vXsA5
            pre = [lambda n=n: e(f"s_add_u32 s{sTX}, s{sXsS}, {n*131072}")] if ab == 0 else []
            op = lambda b=b, v=v, n=n, ab=ab: g.vm(f"buffer_load_dwordx4 {vr(b,4)}, v{v}, s[{SX}:{SX+3}], s{sTX} offen offset:{ab*2048}", dst=R('v', b, 4), tag=('Xs', n, ab))
            vq.append((xs_start + len(pre), xs_start + opt.get('xs_dl', 60) + n + ab * 0.1, pre, op, 'Xs'))
    tcount = [0]
    def addpair(a, b, ta, tb, tres):
        t = TT + 4 * (tcount[0] & 1); tcount[0] += 1
        return [
            lambda: g.valu(f"v_lshlrev_b32 v{t}, 16, v{a}", reads=[(R('v', a, 1), ta)]),
            lambda: g.valu(f"v_lshlrev_b32 v{t+1}, 16, v{b}", reads=[(R('v', b, 1), tb)]),
            lambda: g.valu(f"v_and_b32 v{t+2}, 0xffff0000, v{a}", reads=[(R('v', a, 1), ta)]),
            lambda: g.valu(f"v_and_b32 v{t+3}, 0xffff0000, v{b}", reads=[(R('v', b, 1), tb)]),
            lambda: g.valu(f"v_add_f32 v{t}, v{t}, v{t+1}"),
            lambda: g.valu(f"v_add_f32 v{t+2}, v{t+2}, v{t+3}"),
            lambda: g.valu(f"v_cvt_pk_bf16_f32 v{a}, v{t}, v{t+2}", writes=R('v', a, 1), wtag=tres),
        ]
    pre_store_evs = []
    cur = steps[opt.get("xs_valu", 5)][2]
    for n in range(5):
        ops = []
        for d in range(4):
            ops += addpair(XA + 8 * n + d, XA + 8 * n + 4 + d, ('Xs', n, 0), ('Xs', n, 1), ('XsR', n))
        cur = spread(ops, cur, stride=0)
        v = vXsD if n < 4 else vXsD5
        pre = [lambda n=n: e(f"s_add_u32 s{sP0}, s{sXsD}, {n*8192}")]
        op = lambda n=n, v=v: g.vm(f"buffer_store_dwordx4 {vr(XA+8*n,4)}, v{v}, s[{SWS}:{SWS+3}], s{sP0} offen sc1", reads=R('v', XA + 8 * n, 4), rtag=('XsR', n), ev=('XsSt', n))
        vq.append((cur + 2, cur + 300, pre, op)); pre_store_evs.append(('XsSt', n))
    for sl_ in range(2):
        cur = max(cur, freed[('H', 2 * sl_ + 1)] + 1)
        for cb in range(4):
            ops = []
            for d in range(4):
                ops += addpair(TMP + 4 * cb + d, TMP + 16 + 4 * cb + d, ('Hf', 2 * sl_, cb), ('Hf', 2 * sl_ + 1, cb), ('HsR', sl_, cb))
            cur = spread(ops, cur, stride=0)
            so = sHst + 2 * sl_ + (cb >> 1)
            op = lambda cb=cb, so=so, sl_=sl_: g.vm(f"buffer_store_dwordx4 {vr(TMP+4*cb,4)}, v{vHsSt}, s[{SWS}:{SWS+3}], s{so} offen offset:{(cb&1)*1024} sc1", reads=R('v', TMP + 4 * cb, 4), rtag=('HsR', sl_, cb), ev=('HsSt', sl_, cb))
            vq.append((cur + 1, cur + 2, [], op)); pre_store_evs.append(('HsSt', sl_, cb))
    SIG = opt.get("sig", 2)
    bar_extra_vm[SIG] += pre_store_evs + ['clear']
    vq.append((bar[SIG] + 1, bar[SIG] + 2, [], lambda: g.vm(f"buffer_atomic_add v{vOne}, v{vAtom}, s[{SDBG}:{SDBG+3}], 0 offen")))
    slow = []
    def check(name, load_txt, cmp_txt):
        def f1():
            g.need(R('v', vPoll, 1), name)
            e(f"v_readfirstlane_b32 s{sP1}, v{vPoll}")
        def f2():
            e(cmp_txt); e(f"s_cbranch_scc0 L_slow_{name}"); g.out.append(f"L_back_{name}:")
        slow.append((name, load_txt, cmp_txt))
        return f1, f2
    ld1 = f"buffer_load_dword v{vPoll}, v{vZero}, s[{SDBG}:{SDBG+3}], 0 offen sc1"
    vq.append((poll1_chk - 100, poll1_chk - 99, [], lambda: g.vm(ld1, dst=R('v', vPoll, 1), tag='p1')))
    f1, f2 = check('p1', ld1, f"s_cmp_ge_u32 s{sP1}, 256")
    at(poll1_chk - 2, f1); at(poll1_chk, f2)

    RED = TMP; EF = 216; OP = 232; RC = WF0; SS = WF0
    def pwrite(acc_of, ev):
        ops = []
        for j in range(8):
            for c in range(2):
                a = acc_of(j, c)
                ops.append(lambda a=a, j=j, c=c: g.lg(f"ds_write_b128 v{vPW}, {ar(a,4)} offset:{(2*j+c)*1024}", ev=ev))
        return ops
    def pread(nm):
        ops = []
        for blk in range(4):
            for w2 in range(4):
                b = RED + 16 * w2 + 4 * blk
                v = vRed if w2 < 2 else vRed2
                off = (w2 & 1) * BRING + blk * 1024
                ops.append(lambda b=b, v=v, off=off, blk=blk, w2=w2: g.lg(f"ds_read_b128 {vr(b,4)}, v{v} offset:{off}", dst=R('v', b, 4), tag=(nm, blk, w2), ev=nm + 'r'))
        return ops
    def padd(nm, blk):
        ops = []
        for stage in range(3):
            for d in range(4):
                a0 = RED + 4 * blk + d
                if stage == 0: ops.append(lambda a0=a0: g.valu(f"v_add_f32 v{a0}, v{a0}, v{a0+16}", reads=[(R('v', a0, 1), (nm, blk, 0)), (R('v', a0 + 16, 1), (nm, blk, 1))]))
                elif stage == 1: ops.append(lambda a0=a0: g.valu(f"v_add_f32 v{a0+32}, v{a0+32}, v{a0+48}", reads=[(R('v', a0 + 32, 1), (nm, blk, 2)), (R('v', a0 + 48, 1), (nm, blk, 3))]))
                else: ops.append(lambda a0=a0: g.valu(f"v_add_f32 v{a0}, v{a0}, v{a0+32}", writes=R('v', a0, 1), wtag=(nm + 's', blk)))
        return ops
    spread(pwrite(lambda j, c: (j * 4 + 2 + c) * 4, 'Wf'), P0[8] + 6, stride=4, limit=bar[8] - 4)
    bar_extra_lg[8].append('Wf')
    cur = spread(pread('Rf'), bar[8] + 2, stride=3)
    cur += 8
    for blk in range(4):
        cur = spread(padd('Rf', blk), cur, stride=0)
        op = lambda blk=blk: g.vm(f"buffer_store_dwordx4 {vr(RED+4*blk,4)}, v{vRxSt}, s[{SWS}:{SWS+3}], 0 offen offset:{blk*1024} sc1", reads=R('v', RED + 4 * blk, 4), rtag=('Rfs', blk), ev=('RxSt', blk))
        vq.append((cur + 1, cur + 2, [], op))
    assert cur < bar[9] - 8
    bar_extra_lg[9].append('Rfr')
    spread(pwrite(lambda j, c: (j * 4 + c) * 4, 'Wo'), bar[9] + 2, stride=4, limit=bar[10] - 4)
    bar_extra_lg[10].append('Wo')
    bar_extra_vm[10] += [('RxSt', b) for b in range(4)]
    vq.append((bar[10] + 1, bar[10] + 2, [], lambda: g.vm(f"buffer_store_dword v{vOne}, v{vFlSt}, s[{SWS}:{SWS+3}], 0 offen sc1")))
    cur = spread(pread('Ro'), bar[10] + 2, stride=3)
    cur += 8
    for blk in range(4):
        cur = spread(padd('Ro', blk), cur, stride=0)
        cur = spread([lambda blk=blk: g.lg(f"ds_write_b128 v{vPW}, {vr(RED+4*blk,4)} offset:{16384+blk*1024}", reads=R('v', RED + 4 * blk, 4), rtag=('Ros', blk), ev='Wr')], cur + 1)
    assert cur < bar[11] - 4
    bar_extra_lg[11].append('Wr')
    ops = []
    for jj in range(2):
        for hf in range(2):
            ops.append(lambda jj=jj, hf=hf: g.lg(f"ds_read_b128 {vr(EF+8*jj+4*hf,4)}, v{vLE} offset:{jj*2048+hf*256}", dst=R('v', EF + 8 * jj + 4 * hf, 4), tag='LE'))
            ops.append(lambda jj=jj, hf=hf: g.lg(f"ds_read_b128 {vr(OP+8*jj+4*hf,4)}, v{(vLO0,vLO1)[jj]} offset:{hf*256}", dst=R('v', OP + 8 * jj + 4 * hf, 4), tag='LO'))
    for hf in range(2):
        ops.append(lambda hf=hf: g.lg(f"ds_read_b128 {vr(RED+4*hf,4)}, v{vLK} offset:{hf*256}", dst=R('v', RED + 4 * hf, 4), tag='LK'))
    ops.append(lambda: g.lg(f"ds_read_b32 v{vKc}, v{vLKc}", dst=R('v', vKc, 1), tag='LKc'))
    spread(ops, bar[11] + 2, stride=3)
    p2 = bar[12] + opt.get("p2", 0)
    ld2 = f"buffer_load_dword v{vPoll}, v{vFlP}, s[{SWS}:{SWS+3}], 0 offen sc1"
    vq.append((p2, p2 + 1, [], lambda: g.vm(ld2, dst=R('v', vPoll, 1), tag='p2')))
    f1, f2 = check('p2', ld2, f"s_cmp_eq_u32 s{sP1}, 1")
    c2 = p2 + 72
    at(c2 - 2, f1); at(c2, f2)
    k = 0
    for jj in range(2):
        for hf in range(2):
            vq.append((c2 + 1, c2 + 2 + k, [], lambda jj=jj, hf=hf: g.vm(f"buffer_load_dwordx4 {vr(RC+8*jj+4*hf,4)}, v{vGE}, s[{SWS}:{SWS+3}], 0 offen offset:{jj*2048+hf*256} sc1", dst=R('v', RC + 8 * jj + 4 * hf, 4), tag='GE'))); k += 8
            vq.append((c2 + 1, c2 + 2 + k, [], lambda jj=jj, hf=hf: g.vm(f"buffer_load_dwordx4 {vr(RC+16+8*jj+4*hf,4)}, v{(vGO0,vGO1)[jj]}, s[{SWS}:{SWS+3}], 0 offen offset:{hf*256} sc1", dst=R('v', RC + 16 + 8 * jj + 4 * hf, 4), tag='GO'))); k += 8
    for hf in range(2):
        vq.append((c2 + 1, c2 + 2 + k, [], lambda hf=hf: g.vm(f"buffer_load_dwordx4 {vr(RED+8+4*hf,4)}, v{vGK}, s[{SWS}:{SWS+3}], 0 offen offset:{hf*256} sc1", dst=R('v', RED + 8 + 4 * hf, 4), tag='GK'))); k += 8
    vq.append((c2 + 1, c2 + 2 + k, [], lambda: g.vm(f"buffer_load_dword v{vKc2}, v{vGKc}, s[{SWS}:{SWS+3}], 0 offen sc1", dst=R('v', vKc2, 1), tag='GKc')))
    ops = []
    for d in range(8):
        ops.append(lambda d=d: g.valu(f"v_add_f32 v{RED+d}, v{RED+d}, v{RED+8+d}", reads=[(R('v', RED + d, 1), 'LK'), (R('v', RED + 8 + d, 1), 'GK')], writes=R('v', RED + d, 1), wtag='K'))
    for d in range(16):
        ops.append(lambda d=d: g.valu(f"v_add_f32 v{EF+d}, v{EF+d}, v{RC+d}", reads=[(R('v', EF + d, 1), 'LE'), (R('v', RC + d, 1), 'GE')]))
        ops.append(lambda d=d: g.valu(f"v_sub_f32 v{OP+d}, -v{OP+d}, v{RC+16+d}", reads=[(R('v', OP + d, 1), 'LO'), (R('v', RC + 16 + d, 1), 'GO')]))
    for d in range(16):
        ops.append(lambda d=d: g.valu(f"v_sub_f32 v{EF+d}, v{EF+d}, v{RED+(d&7)}", reads=[(R('v', RED + (d & 7), 1), 'K')]))
        ops.append(lambda d=d: g.valu(f"v_sub_f32 v{OP+d}, v{OP+d}, v{RED+(d&7)}"))
    ops.append(lambda: g.valu(f"v_add_f32 v{vKc}, v{vKc}, v{vKc2}", reads=[(R('v', vKc, 1), 'LKc'), (R('v', vKc2, 1), 'GKc')]))
    ops.append(lambda: g.valu(f"v_lshlrev_b32 v{vBia}, 16, v{vBia}", reads=[(R('v', vBia, 1), 'bia')]))
    ops.append(lambda: g.valu(f"v_lshlrev_b32 v{vGam}, 16, v{vGam}", reads=[(R('v', vGam, 1), 'gam')]))
    ops.append(lambda: g.valu(f"v_lshlrev_b32 v{vBet}, 16, v{vBet}", reads=[(R('v', vBet, 1), 'bet')]))
    ops.append(lambda: g.valu(f"v_add_f32 v{vKc}, v{vKc}, v{vBia}"))
    for d in range(16):
        mk = sMask + 2 * (2 * (d >> 3))
        ops.append(lambda d=d, mk=mk: g.valu(f"v_cndmask_b32 v{EF+d}, 0, v{EF+d}, s[{mk}:{mk+1}]"))
    for d in range(8):
        ops.append(lambda d=d: g.valu(f"v_add_f32 v{SS+d}, v{EF+d}, v{EF+8+d}"))
        ops.append(lambda d=d: g.valu(f"v_mul_f32 v{SS+8+d}, v{EF+d}, v{EF+d}"))
    for d in range(8):
        ops.append(lambda d=d: g.valu(f"v_fmac_f32 v{SS+8+d}, v{EF+8+d}, v{EF+8+d}"))
    for d in range(2):
        ops.append(lambda d=d: g.valu(f"v_mov_b32 v{252+d}, 0x{f2u(c0):08x}"))
    comb_start = c2 + opt.get("comb", 150)

    vq = [t if len(t) == 5 else t + (None,) for t in vq]
    chain_next = defaultdict(int); seq = {}
    cnt = defaultdict(int)
    for n_, t in enumerate(vq):
        if t[4] is not None:
            seq[n_] = cnt[t[4]]; cnt[t[4]] += 1
    pending = sorted(range(len(vq)), key=lambda n_: (vq[n_][0], vq[n_][1]))
    cur = 0; lastg = -1
    while pending:
        win = [n_ for n_ in pending[:60] if vq[n_][4] is None or seq[n_] == chain_next[vq[n_][4]]]
        cands = [n_ for n_ in win if vq[n_][0] <= cur]
        if not cands:
            cur = max(cur + 1, min(vq[n_][0] for n_ in win)); continue
        n_ = min(cands, key=lambda n_: vq[n_][1])
        pending.remove(n_)
        ea, dl, pre, op, ch = vq[n_]
        if ch is not None: chain_next[ch] += 1
        gp = max(cur, lastg + 1 + len(pre))
        for k_, p in enumerate(pre):
            at(gp - len(pre) + k_, p)
        at(gp, op)
        lastg = gp
        cur = gp + (SP_UV if gp < P0[8] - 200 else SP_T)
    last = spread(ops, comb_start, stride=0)
    assert last < NM - 20, f"combine too late {last} {NM}"
    lastst = steps[-1][2]
    tw = pwrite(lambda j, c: 128 + (j * 2 + c) * 4, 'Wt')
    tail_w = []
    for k_, fn in enumerate(tw):
        gp = lastst + k_ + 9
        if gp < NM - 1: at(gp, fn)
        else: tail_w.append(fn)

    g.cur = -1
    g.wait(vm=g.ev[('A', 0, 8)])
    e("s_barrier")
    if stamps: stamp()
    for u in range(8): af_read(0, u)()
    g.wait(vm=g.ev[(('B', 0), 3)])
    for fn in tr_reads(('B', 0)): fn()
    g.wait(lg=g.li)
    if stamps: stamp()
    mi = 0
    maxload = 0
    for st, (i, m, g0) in enumerate(steps):
        n = PH_N[i]
        ncb = 4 if i < 8 else 2
        for j in range(8):
            for cc in range(ncb):
                cb = cc if j % 2 == 0 else ncb - 1 - cc
                k = af_slot[(i, j + m)]
                xb = AF0 + 4 * k
                g.need(R('v', xb, 4), ('F', i, j + m))
                if i < 8:
                    wb = WF0 + 16 * (st & 1) + 4 * cb
                    g.need(R('v', wb, 4), ('W', st, cb)); wtxt = vr(wb, 4)
                    d = (j * 4 + cb) * 4; first = (st == 0)
                else:
                    ts = st - NUV
                    wb = 192 + 8 * (ts % NR) + 4 * cb
                    g.need(R('a', wb, 4), ('Hs', ts, cb)); wtxt = ar(wb, 4)
                    d = 128 + (j * 2 + cb) * 4; first = (ts == 0)
                e(f"v_mfma_f32_16x16x32_bf16 {ar(d,4)}, {wtxt}, {vr(xb,4)}, {'0' if first else ar(d,4)}")
                g.cur = mi
                if cc == ncb - 1 and (j == 0 or m == n - 1):
                    free_af.append(k)
                maxload = max(maxload, len(gaps[mi]))
                for fn in gaps[mi]: fn()
                mi += 1
    assert mi == NM
    g.cur = NM
    if stamps: stamp()
    e("s_nop 3")
    for fn in tail_w: fn()
    g.wait(lg=g.li)
    e("s_barrier")
    for fn in pread('Rt'): fn()
    O = OP
    for blk in range(4):
        for hp in range(2):
            a0 = RED + 4 * blk + 2 * hp
            g.valu(f"v_pk_add_f32 {vr(a0,2)}, {vr(a0,2)}, {vr(a0+16,2)}", reads=[(R('v', a0, 2), ('Rt', blk, 0)), (R('v', a0 + 16, 2), ('Rt', blk, 1))])
            g.valu(f"v_pk_add_f32 {vr(a0+32,2)}, {vr(a0+32,2)}, {vr(a0+48,2)}", reads=[(R('v', a0 + 32, 2), ('Rt', blk, 2)), (R('v', a0 + 48, 2), ('Rt', blk, 3))])
        for hp in range(2):
            a0 = RED + 4 * blk + 2 * hp; o = O + 4 * blk + 2 * hp
            e(f"v_pk_add_f32 {vr(o,2)}, {vr(o,2)}, {vr(a0,2)}")
        for hp in range(2):
            a0 = RED + 4 * blk + 2 * hp; o = O + 4 * blk + 2 * hp
            e(f"v_pk_add_f32 {vr(o,2)}, {vr(o,2)}, {vr(a0+32,2)}")
    for jj in range(2):
        mk = sMask + 2 * (2 * jj + 1)
        e(f"s_mov_b64 exec, s[{mk}:{mk+1}]")
        for hp in range(4):
            e(f"v_pk_add_f32 {vr(SS+2*hp,2)}, {vr(SS+2*hp,2)}, {vr(O+8*jj+2*hp,2)}")
            e(f"v_pk_fma_f32 {vr(SS+8+2*hp,2)}, {vr(O+8*jj+2*hp,2)}, {vr(O+8*jj+2*hp,2)}, {vr(SS+8+2*hp,2)}")
    e("s_mov_b64 exec, -1")
    e("s_nop 1")
    for k_ in range(8): e(f"v_add_f32_dpp v{SS+k_}, v{SS+k_}, v{SS+k_} row_ror:8 row_mask:0xf bank_mask:0x3")
    for k_ in range(8): e(f"v_add_f32_dpp v{SS+k_}, v{SS+8+k_}, v{SS+8+k_} row_ror:8 row_mask:0xf bank_mask:0xc")
    for k_ in range(4): e(f"v_add_f32_dpp v{SS+k_}, v{SS+k_}, v{SS+k_} row_half_mirror row_mask:0xf bank_mask:0x5")
    for k_ in range(4): e(f"v_add_f32_dpp v{SS+k_}, v{SS+4+k_}, v{SS+4+k_} row_half_mirror row_mask:0xf bank_mask:0xa")
    for k_ in range(4): e(f"v_add_f32_dpp v{SS+k_}, v{SS+k_}, v{SS+k_} quad_perm:[1,0,3,2] row_mask:0xf bank_mask:0xf")
    for k_ in range(4): e(f"v_add_f32_dpp v{SS+k_}, v{SS+k_}, v{SS+k_} quad_perm:[2,3,0,1] row_mask:0xf bank_mask:0xf")
    e("s_mov_b32 exec_lo, 0x11111111"); e("s_mov_b32 exec_hi, 0x11111111")
    g.lg(f"ds_write_b128 v{vSW}, {vr(SS,4)}")
    e("s_mov_b64 exec, -1")
    g.wait(lg=g.li)
    e("s_barrier")
    Q = RED
    for w2 in range(4):
        g.lg(f"ds_read2_b32 {vr(Q+2*w2,2)}, v{vSR} offset0:{w2*64} offset1:{w2*64+8}")
    g.wait(lg=g.li)
    e(f"v_pk_add_f32 {vr(Q,2)}, {vr(Q,2)}, {vr(Q+2,2)}")
    e(f"v_pk_add_f32 {vr(Q+4,2)}, {vr(Q+4,2)}, {vr(Q+6,2)}")
    e(f"v_pk_add_f32 {vr(Q,2)}, {vr(Q,2)}, {vr(Q+4,2)}")
    e(f"v_mul_f32 v{Q+2}, s{sInvN}, v{Q}")
    e(f"v_fma_f32 v{Q+5}, -v{Q}, v{Q+2}, v{Q+1}")
    e(f"v_add_f32 v{Q+4}, v{vKc}, v{Q+2}")
    e(f"v_max_f32 v{Q+5}, 0, v{Q+5}")
    g.vm(f"buffer_store_dwordx2 {vr(Q+4,2)}, v{vStSt}, s[{SWS}:{SWS+3}], 0 offen sc1")
    if stamps: stamp()
    Pp = RED + 8
    e(f"s_mov_b32 s{sP0}, 0x8000")
    g.out.append("L_poll3:")
    for u in range(4):
        e(f"buffer_load_dwordx2 {vr(Pp+2*u,2)}, v{vStP}, s[{SWS}:{SWS+3}], 0 offen offset:{u*256} sc1")
    e("s_waitcnt vmcnt(0)")
    e(f"v_max3_u32 v{Q}, v{Pp+1}, v{Pp+3}, v{Pp+5}")
    e(f"v_max_u32 v{Q}, v{Q}, v{Pp+7}")
    e(f"v_cmp_eq_u32 vcc, -1, v{Q}")
    e(f"s_sub_u32 s{sP0}, s{sP0}, 1")
    e("s_nop 3")
    e("s_cbranch_vccz L_got3")
    e(f"s_cmp_lg_u32 s{sP0}, 0")
    e("s_cbranch_scc1 L_poll3")
    g.out.append("L_got3:")
    if stamps: stamp()
    e(f"v_add_f32 v{Q}, v{Pp}, v{Pp+2}")
    e(f"v_add_f32 v{Q}, v{Q}, v{Pp+4}")
    e(f"v_mul_f32 v{Q}, s{sC+4}, v{Q}")
    e(f"v_fmac_f32 v{Q}, v{vF3}, v{Pp+6}")
    e(f"v_add_f32 v{Q+2}, v{Pp+1}, v{Pp+3}")
    e(f"v_mov_b32 v{Q+1}, v{Q}")
    e(f"v_add_f32 v{Q+3}, v{Pp+5}, v{Pp+7}")
    e(f"v_add_f32 v{Q+2}, v{Q+2}, v{Q+3}")
    e(f"v_permlane32_swap_b32 v{Q}, v{Q+1}")
    e(f"v_mul_f32 v{Q+2}, s{sC+5}, v{Q+2}")
    e(f"v_add_f32 v{Q}, v{Q}, v{Q+1}")
    for u in range(4): e(f"v_sub_f32 v{Pp+2*u}, v{Pp+2*u}, v{Q}")
    e(f"v_mul_f32 v{Q+3}, v{Pp}, v{Pp}")
    e(f"v_fmac_f32 v{Q+3}, v{Pp+2}, v{Pp+2}")
    e(f"v_fmac_f32 v{Q+3}, v{Pp+4}, v{Pp+4}")
    e(f"v_mul_f32 v{Q+4}, v{vF3}, v{Pp+6}")
    e(f"v_fma_f32 v{Q+2}, s{sC+4}, v{Q+3}, v{Q+2}")
    e(f"v_fmac_f32 v{Q+2}, v{Q+4}, v{Pp+6}")
    e(f"v_sub_f32 v{Q+4}, v{vKc}, v{Q}")
    e(f"v_mov_b32 v{Q+3}, v{Q+2}")
    e("s_nop 1")
    e(f"v_permlane32_swap_b32 v{Q+2}, v{Q+3}")
    e(f"v_add_f32 v{Q+2}, v{Q+2}, v{Q+3}")
    e(f"v_add_f32 v{Q+2}, 0x{f2u(1e-5):08x}, v{Q+2}")
    e(f"v_rsq_f32 v{Q+2}, v{Q+2}")
    e("s_nop 0")
    e(f"v_mul_f32 v{Q+2}, v{vGam}, v{Q+2}")
    e(f"v_fma_f32 v{Q+3}, v{Q+4}, v{Q+2}, v{vBet}")
    e(f"ds_write2_b32 v{vABw}, v{Q+2}, v{Q+3} offset0:0 offset1:32")
    AA = RED + 16; BB = RED + 24
    e(f"ds_read_b128 {vr(AA,4)}, v{vABr}")
    e(f"ds_read_b128 {vr(AA+4,4)}, v{vABr} offset:16")
    e(f"ds_read_b128 {vr(BB,4)}, v{vABr} offset:128")
    e(f"ds_read_b128 {vr(BB+4,4)}, v{vABr} offset:144")
    e("s_waitcnt lgkmcnt(0)")
    U = RED + 32
    for (src, row) in ((EF, 0), (OP, 1), (EF + 8, 2), (OP + 8, 3)):
        u = U + 8 * (row & 1); pk = RED + 48 + 4 * row
        for hp in range(4): e(f"v_pk_fma_f32 {vr(src+2*hp,2)}, {vr(src+2*hp,2)}, {vr(AA+2*hp,2)}, {vr(BB+2*hp,2)}")
        for hp in range(4): e(f"v_pk_mul_f32 {vr(u+2*hp,2)}, {vr(src+2*hp,2)}, {vr(src+2*hp,2)}")
        for hp in range(4): e(f"v_pk_fma_f32 {vr(u+2*hp,2)}, {vr(u+2*hp,2)}, s[{sC}:{sC+1}], v[252:253]")
        for hp in range(4): e(f"v_pk_mul_f32 {vr(u+2*hp,2)}, {vr(u+2*hp,2)}, {vr(src+2*hp,2)}")
        for d in range(8): e(f"v_exp_f32 v{u+d}, v{u+d}")
        for hp in range(4): e(f"v_pk_add_f32 {vr(u+2*hp,2)}, {vr(u+2*hp,2)}, s[{sC+2}:{sC+3}]")
        for d in range(8): e(f"v_rcp_f32 v{u+d}, v{u+d}")
        for hp in range(4): e(f"v_pk_mul_f32 {vr(u+2*hp,2)}, {vr(u+2*hp,2)}, {vr(src+2*hp,2)}")
        for hp in range(4): e(f"v_cvt_pk_bf16_f32 v{pk+hp}, v{u+2*hp}, v{u+2*hp+1}")
        e(f"buffer_store_dwordx4 {vr(pk,4)}, v{vOut}, s[{SOUT}:{SOUT+3}], s{sOutO} offen offset:{row*1024}")
    if stamps:
        e("s_waitcnt vmcnt(0)")
        e(f"s_memtime s[{sXp}:{sXp+1}]".replace(f"s[{sXp}:{sXp+1}]", "s[34:35]"))
        e("s_memrealtime s[36:37]")
        e("s_waitcnt lgkmcnt(0)")
        nrec = 4 + nst[0]
        regs = [sStamp, sStamp + 2, 34, 36] + [sStamp + 4 + 2 * k for k in range(nst[0])]
        e(f"s_mul_i32 s3, s2, {8*nrec}"); e(f"s_add_u32 s3, s3, {WS_STAMP}")
        for k, r in enumerate(regs):
            e(f"v_mov_b32 v152, s{r}"); e(f"v_mov_b32 v153, s{r+1}")
            e(f"buffer_store_dwordx2 v[152:153], v{vAtom}, s[{SWS}:{SWS+3}], s3 offen offset:{8*k}")
            e("s_nop 1")
    e("s_branch L_end")
    for (name, ld, cmpt) in slow:
        g.out.append(f"L_slow_{name}:")
        e(f"s_mov_b32 s{sP0}, 0x8000")
        g.out.append(f"L_spin_{name}:")
        e(ld); e("s_waitcnt vmcnt(0)")
        e(f"v_readfirstlane_b32 s{sP1}, v{vPoll}")
        e("s_nop 3")
        e(cmpt); e(f"s_cbranch_scc1 L_back_{name}")
        e("s_sleep 4")
        e(f"s_sub_u32 s{sP0}, s{sP0}, 1"); e(f"s_cmp_lg_u32 s{sP0}, 0"); e(f"s_cbranch_scc1 L_spin_{name}")
        e(f"s_branch L_back_{name}")
    g.out.append("L_end:")
    hdr = open("standalone__self_sup_conv_stem_hubert__speech.s.ref").read().split("\n")
    com = [l for l in hdr if l.startswith(";") and "@launch" not in l]
    txt = "\n".join(com) + f"\n; @launch grid=(256,1,1) block=(256,1,1) lds={LDS_TOTAL}\n"
    txt += f""".amdgcn_target "amdgcn-amd-amdhsa--gfx950"
.text
.globl {KN}
.p2align 8
.type {KN},@function
{KN}:
""" + "\n".join(g.out) + f"""
s_endpgm
.section .rodata,"a"
.p2align 6
.amdhsa_kernel {KN}
  .amdhsa_next_free_vgpr 512
  .amdhsa_next_free_sgpr 102
  .amdhsa_accum_offset 256
  .amdhsa_group_segment_fixed_size 0
  .amdhsa_kernarg_size 64
  .amdhsa_user_sgpr_count 2
  .amdhsa_user_sgpr_kernarg_segment_ptr 1
  .amdhsa_system_sgpr_workgroup_id_x 1
.end_amdhsa_kernel
"""
    info = dict(maxload=maxload, nwait=g.nwait, mind=g.mind, nst=nst[0], lines=len(g.out))
    return txt, info


import struct
def f2u(f): return struct.unpack("<I", struct.pack("<f", f))[0]


if __name__ == "__main__":
    import json
    name = sys.argv[1]
    opt = json.loads(sys.argv[2]) if len(sys.argv) > 2 else {}
    txt, info = generate(opt)
    open(name, "w").write(txt)
    print(name, info)
```

```python
import sys, math
from collections import defaultdict

KN = "standalone__self_sup_conv_stem_hubert__speech_kernel"

ABUF = 35360; ABLK = 2080
BBASE = 70720; BRING = 21760; BSLOT = 4352; BD = 1088; NSLOT = 5
LDS_DUMMY = 157760
ST_OFF = 158784
AB_OFF = 159808
LDS_TOTAL = 160832
WS_HS = 0; WS_XS = 8 << 20; WS_RX = 16 << 20; WS_FL = 24 << 20; WS_ST = (24 << 20) + 65536
WS_STAMP = 32 << 20
WS_BYTES = 64 << 20
OOB = 0x40000000

SX, SWT, SWS, SOUT, SDBG = 4, 8, 12, 16, 20
sB, sG, sRole, sT, sW = 24, 25, 26, 27, 28
sMA, sMA9 = 29, 30
sMB = 32
sXp = 33
sWp = 41
sXsT = 49
sTB, sTA, sHsO = 50, 51, 52
sH = 53
sHst = 57
sXsS, sXsD, sTX = 61, 62, 63
sMask = 64
sOutO, sInvN, sP0, sP1 = 72, 73, 74, 75
sPtrB, sPtrG, sPtrBe = 76, 78, 80
sC = 82
sStamp = 88

vA, vA9, vAT, vAT9 = 1, 2, 3, 4
vBd = 5
vAf, vBe, vBo, vBh, vHs, vHsSt = 9, 10, 11, 12, 13, 14
vXsA, vXsA5, vXsD, vXsD5 = 15, 16, 17, 18
vAtom, vOne, vRed, vRed2, vPW, vRxSt = 19, 20, 21, 22, 23, 24
vLE, vLO0, vLO1, vGE, vGO0, vGO1, vLK, vGK, vLKc, vGKc = 25, 26, 27, 28, 29, 30, 31, 32, 33, 34
vStSt, vStP, vFlSt, vFlP, vSW, vSR, vABw, vABr, vOut, vF3 = 35, 36, 37, 38, 39, 40, 41, 42, 43, 44
vGam, vBet, vBia = 45, 46, 47
AF0, NAF = 48, 18
WF0 = 120
TMP = 152
vKc, vKc2, vPoll = 248, 249, 250
vPl = vOne; vNon, vNsrc, vNst, vSig = 240, 242, 244, 245
sNon = 26

PH_N = [8, 8, 8, 8, 8, 8, 7, 7] + [8] * 8
vTw, vTx, vTp = 232, 233, 234
vTt, vTi, vTd = 254, 0, 255
sXsS1 = 24


def vr(b, n): return f"v[{b}:{b+n-1}]" if n > 1 else f"v{b}"
def ar(b, n): return f"a[{b}:{b+n-1}]" if n > 1 else f"a{b}"
def R(bank, b, n): return [(bank, b + i) for i in range(n)]


class Gen:
    def __init__(s):
        s.out = []
        s.vi = s.vd = s.li = s.ld = 0
        s.pend = {}
        s.tag = {}
        s.ev = {}
        s.nwait = 0
        s.cur = -1
        s.issue_gap = {}
        s.mind = {}
        s.mute = 0; s.mute_until = 0

    abl = ()
    def e(s, t):
        if s.cur > 300 and s.abl:
            if 'nob' in s.abl and t.startswith('buffer_load_dwordx4 v') and 's[8:11]' in t and ' lds' in t: return
            if 'noa' in s.abl and t.startswith('buffer_load_dwordx4 v') and 's[8:11]' not in t and ' lds' in t: return
            if 'notr' in s.abl and t.startswith('ds_read_b64_tr'): return
            if 'noaf' in s.abl and t.startswith('ds_read_b128') and ', v9 ' in t: return
            if 'nohs' in s.abl and t.startswith('buffer_load_dwordx4 a') and s.cur > 2200: return
            if 'notch' in s.abl and t.startswith('buffer_load_dword v255'): return
        s.out.append("  " + t)

    def wait(s, vm=None, lg=None):
        p = []
        if vm is not None and vm > s.vd:
            n = s.vi - vm
            if n > 63: n = 63
            p.append(f"vmcnt({n})"); s.vd = max(s.vd, s.vi - n)
        if lg is not None and lg > s.ld:
            n = s.li - lg
            if n > 15: n = 15
            p.append(f"lgkmcnt({n})"); s.ld = max(s.ld, s.li - n)
        if p:
            s.e("s_waitcnt " + " ".join(p)); s.nwait += 1

    def need(s, regs, tag=None, what=""):
        vm = lg = None
        for r in regs:
            if tag is not None:
                assert s.tag.get(r) == tag, f"content mismatch {r}: have {s.tag.get(r)} want {tag} ({what}) at gap {s.cur}"
            pd = s.pend.get(r)
            if pd:
                k, i = pd
                if k == 'vm': vm = max(vm or 0, i)
                else: lg = max(lg or 0, i)
                d = s.cur - s.issue_gap[(k, i)]
                key = tag[0] if isinstance(tag, tuple) else tag
                if (k == 'vm' and i > s.vd) or (k == 'lg' and i > s.ld):
                    s.mind[key] = min(s.mind.get(key, 10**9), d)
                del s.pend[r]
        s.wait(vm, lg)

    def vm(s, t, dst=None, tag=None, ev=None, reads=None, rtag=None):
        if reads: s.need(reads, rtag, t)
        s.e(t); s.vi += 1; s.issue_gap[('vm', s.vi)] = s.cur
        if dst:
            for r in dst:
                s.pend[r] = ('vm', s.vi); s.tag[r] = tag
        if ev: s.ev[ev] = s.vi
        return s.vi

    def lg(s, t, dst=None, tag=None, ev=None, reads=None, rtag=None):
        if reads: s.need(reads, rtag, t)
        s.e(t); s.li += 1; s.issue_gap[('lg', s.li)] = s.cur
        if dst:
            for r in dst:
                s.pend[r] = ('lg', s.li); s.tag[r] = tag
        if ev: s.ev[ev] = s.li
        return s.li

    def valu(s, t, reads=(), writes=(), wtag=None):
        for regs, tag in reads: s.need(regs, tag, t)
        if not (s.mute and (s.mute == 2 or s.cur < s.mute_until)): s.e(t)
        for r in writes:
            assert r not in s.pend, f"VALU write over pending load {r} {t}"
            s.tag[r] = wtag


def generate(opt):
    g = Gen()
    e = g.e
    g.abl = opt.get('abl', ())
    stamps = opt.get("stamps", False)
    SP_UV = opt.get("sp_uv", 5); SP_T = opt.get("sp_t", 4)
    CAP = opt.get("cap", 2)
    TSC = opt.get("tsc", "sc1"); STSC = opt.get("stsc", "sc1"); RXSC = opt.get("rxsc", "sc1")
    P0 = []; SL = []; x = 0
    for i, n in enumerate(PH_N):
        P0.append(x); sl = 32 if i < 8 else 16; SL.append(sl); x += n * sl
    NM = x
    steps = []
    for i, n in enumerate(PH_N):
        for m in range(n): steps.append((i, m, P0[i] + m * SL[i]))
    NUV = sum(PH_N[:8])
    bar = [P0[i] + (PH_N[i] - 2) * SL[i] for i in range(16)]
    gaps = defaultdict(list)
    info_pre = []

    def at(gp, fn): gaps[gp].append(fn)

    def spread(ops, start, stride=1, cap=CAP, limit=None):
        cur = start; last = start
        for fn in ops:
            while len(gaps[cur]) >= cap: cur += 1
            gaps[cur].append(fn); last = cur
            cur += stride if stride > 0 else 0
        if limit is not None: assert last < limit, f"spread overflow {last} >= {limit}"
        return last

    nst = [0]
    STR = [92, 94, 96, 98, 100, 76, 78, 80, 0]
    sset = opt.get("sset", ['pro1', 'pro2', 'end', 'pub', 'got'])
    def stamp(name):
        if not stamps or name not in sset: return
        k = nst[0]; nst[0] += 1
        e(f"{'s_memrealtime' if opt.get('rt') else 's_memtime'} s[{STR[k]}:{STR[k]+1}]")

    e("s_cmp_ge_u32 s2, 256")
    e("s_cbranch_scc1 L_end")
    e("s_load_dwordx4 s[36:39], s[0:1], 0")
    e(f"s_load_dwordx4 s[{sPtrB}:{sPtrB+3}], s[0:1], 16")
    e(f"s_load_dwordx2 s[{sPtrBe}:{sPtrBe+1}], s[0:1], 32")
    e("s_load_dwordx2 s[40:41], s[0:1], 40")
    e("s_load_dwordx4 s[44:47], s[0:1], 48")
    e("s_memrealtime s[86:87]")
    if stamps:
        e(f"s_memtime s[{sStamp}:{sStamp+1}]"); e(f"s_memrealtime s[{sStamp+2}:{sStamp+3}]")
    T0, T1, T2, T3, T4, T5 = 152, 153, 154, 155, 156, 157
    LN, RR, QQ = 158, 159, 160
    e(f"v_lshrrev_b32 v{T0}, 6, v0")
    e(f"v_and_b32 v{LN}, 63, v0")
    e(f"v_readfirstlane_b32 s{sW}, v{T0}")
    e("s_and_b32 s3, s2, 7")
    e(f"s_and_b32 s{sB}, s3, 1")
    e(f"s_and_b32 s{sG}, s3, 6")
    e("s_bfe_u32 s3, s2, 0x10003")
    e(f"s_add_u32 s{sG}, s{sG}, s3")
    e(f"s_bfe_u32 s{sRole}, s2, 0x10004")
    e(f"s_lshr_b32 s{sT}, s2, 5")
    e(f"v_and_b32 v{RR}, 15, v0")
    e(f"v_lshrrev_b32 v{QQ}, 4, v{LN}")
    e(f"s_lshl_b32 s3, s{sW}, 14")
    e(f"v_lshlrev_b32 v{T0}, 12, v{QQ}")
    e(f"v_lshl_add_u32 v{T0}, v{RR}, 4, v{T0}")
    e(f"v_add_u32 v{vA}, s3, v{T0}")
    e(f"s_lshr_b32 s3, s{sW}, 1")
    e(f"s_lshl_b32 s{sP0}, s3, 30")
    e(f"v_add_u32 v{vA9}, s{sP0}, v{vA}")
    e(f"s_mul_i32 s{sMA}, s3, {ABLK}")
    e(f"s_and_b32 s{sP1}, s{sW}, 1")
    e(f"s_lshl_b32 s{sP1}, s{sP1}, 10")
    e(f"s_add_u32 s{sMA}, s{sMA}, s{sP1}")
    e(f"s_add_u32 s{sMA9}, s{sMA}, {8*4160}")
    e(f"s_add_u32 s{sMA9+1}, s{sMA}, {8*4160+ABUF}")
    e("s_cmp_lg_u32 s3, 0")
    e(f"s_cselect_b32 s{sMA9}, {LDS_DUMMY}, s{sMA9}")
    e(f"s_cselect_b32 s{sMA9+1}, {LDS_DUMMY}, s{sMA9+1}")
    e(f"s_mul_i32 s{sMB}, s{sW}, {BRING}")
    e(f"s_add_u32 s{sMB}, s{sMB}, {BBASE}")
    e(f"v_lshrrev_b32 v{T0}, 3, v{LN}")
    e(f"v_and_b32 v{T1}, 7, v0")
    e(f"v_and_b32 v{T2}, 1, v{QQ}")
    e(f"v_lshlrev_b32 v{T2}, 1, v{T2}")
    e(f"v_xor_b32 v{T1}, v{T1}, v{T2}")
    e(f"s_lshl_b32 s3, s{sRole}, 2")
    e(f"v_xor_b32 v{T1}, s3, v{T1}")
    e(f"v_lshlrev_b32 v{T1}, 4, v{T1}")
    e(f"v_lshl_add_u32 v{T1}, v{T0}, 10, v{T1}")
    e(f"s_lshl_b32 s3, s{sW}, 15")
    e(f"s_lshl_b32 s{sP1}, s{sG}, 7")
    e(f"s_add_u32 s3, s3, s{sP1}")
    e(f"v_add_u32 v{vBd}, s3, v{T1}")
    for d in range(1, 4): e(f"v_add_u32 v{vBd+d}, {8192*d}, v{vBd}")
    e("s_waitcnt lgkmcnt(0)")
    for (srd, p, n) in ((SX, 36, 8192000), (SWT, 38, 16252928), (SWS, 46, WS_BYTES), (SOUT, 40, 0), (SDBG, 44, 256)):
        e(f"s_mov_b32 s{srd}, s{p}"); e(f"s_and_b32 s{srd+1}, s{p+1}, 0xffff")
        if n: e(f"s_mov_b32 s{srd+2}, {n}")
        e(f"s_mov_b32 s{srd+3}, 0x20000")
    e(f"s_mul_i32 s3, s{sB}, 4096000")
    e(f"s_mul_i32 s{sP1}, s{sT}, {127*4096}")
    e(f"s_add_u32 s{sTX}, s3, s{sP1}")
    e(f"s_mul_i32 s3, s{sRole}, {512+2048}")
    e(f"s_add_u32 s{sXp}, s{sTX}, s3")
    e(f"s_mul_i32 s{sWp}, s{sRole}, {262144+1048576}")
    def later_bases():
        e(f"s_lshl_b32 s3, s{sRole}, 10"); e(f"s_sub_u32 s3, 512, s3")
        e(f"s_add_u32 s{sXp+2}, s{sXp}, s3")
        e(f"s_lshl_b32 s{sP1}, s3, 9"); e(f"s_add_u32 s{sWp+2}, s{sWp}, s{sP1}")
        e(f"s_lshl_b32 s{sTA}, s{sRole}, 9"); e(f"s_add_u32 s{sTA}, s{sTA}, 1024")
        e(f"s_add_u32 s{sXp+4}, s{sTX}, s{sTA}"); e(f"s_lshl_b32 s{sWp+4}, s{sTA}, 9")
        e(f"s_add_u32 s{sXp+6}, s{sXp+4}, s3"); e(f"s_add_u32 s{sXp+6}, s{sXp+6}, 2048")
        e(f"s_add_u32 s{sWp+6}, s{sWp+4}, s{sP1}"); e(f"s_add_u32 s{sWp+6}, s{sWp+6}, 1048576")
        for i in (1, 3, 5, 7):
            e(f"s_add_u32 s{sXp+i}, s{sXp+i-1}, 256"); e(f"s_add_u32 s{sWp+i}, s{sWp+i-1}, 131072")
    def touch_setup():
        e(f"s_and_b32 s3, s{sG}, 6"); e("s_lshl_b32 s3, s3, 7")
        e(f"s_lshl_b32 s{sTB}, s{sT}, 21"); e(f"s_add_u32 s3, s3, s{sTB}")
        e(f"s_and_b32 s{sP1}, s{sG}, 1"); e(f"s_lshl_b32 s{sP1}, s{sP1}, 16"); e(f"s_add_u32 s3, s3, s{sP1}")
        e(f"s_lshl_b32 s{sP1}, s{sW}, 14"); e(f"s_add_u32 s3, s3, s{sP1}")
        e(f"v_lshrrev_b32 v{T0}, 2, v{LN}")
        e(f"v_and_b32 v{T1}, 3, v0"); e(f"v_lshlrev_b32 v{T1}, 6, v{T1}")
        e(f"v_lshl_add_u32 v{T1}, v{T0}, 10, v{T1}")
        e(f"v_add_u32 v{vTp}, s3, v{T1}")
        e("s_and_b32 s3, s2, 15"); e("s_lshl_b32 s3, s3, 13"); e(f"s_add_u32 s3, s3, s{sTB}")
        e(f"s_lshl_b32 s{sTB}, s{sW}, 11"); e(f"s_add_u32 s3, s3, s{sTB}")
        e(f"v_lshlrev_b32 v{T0}, 7, v{T0}"); e(f"v_add_u32 v{vTw}, s3, v{T0}")
        e(f"s_lshl_b32 s3, s{sG}, 16"); e(f"s_add_u32 s3, s3, s{sP1}")
        e(f"v_bfe_u32 v{T1}, v0, 3, 1"); e(f"v_lshlrev_b32 v{T1}, 7, v{T1}")
        e(f"v_lshl_add_u32 v{T1}, v{QQ}, 12, v{T1}")
        e(f"v_add_u32 v{vTx}, s3, v{T1}")
    def touch(kind, i):
        if kind == 'p': return lambda: g.vm(f"buffer_load_dword v{vTd}, v{vTp}, s[{SWT}:{SWT+3}], s{sWp+i} offen")
        if kind == 'w': return lambda: g.vm(f"buffer_load_dword v{vTd}, v{vTw}, s[{SWT}:{SWT+3}], s{sWp+i} offen")
        if kind == 'x': return lambda: g.vm(f"buffer_load_dword v{vTd}, v{vTx}, s[{SX}:{SX+3}], s{sXp+i} offen")

    def a_dma_ops(i, n):
        buf = i & 1
        pre = []
        if n < 8: pre.append(lambda: e(f"s_add_u32 m0, s{sMA}, {buf*ABUF + n*4160}"))
        else: pre.append(lambda: e(f"s_mov_b32 m0, s{sMA9+buf}"))
        if i < 8:
            pre.append(lambda: e(f"s_add_u32 s{sTA}, s{sXp+i}, {n*65536}"))
            v = vA if n < 8 else vA9
            op = lambda: g.vm(f"buffer_load_dwordx4 v{v}, s[{SX}:{SX+3}], s{sTA} offen {opt.get('asc', '')} lds", ev=('A', i, n))
        else:
            pre.append(lambda: e(f"s_add_u32 s{sTA}, s{sXsT}, {(i-8)*34816 + n*4096}"))
            v = vAT if n < 8 else vAT9
            op = lambda: g.vm(f"buffer_load_dwordx4 v{v}, s[{SWS}:{SWS+3}], s{sTA} offen {TSC} lds", ev=('A', i, n))
        return pre, op

    HPOS = opt.get("hpos", [19, 21, 49, 51])
    items = []
    for s_ in range(NUV):
        items.append(('B', s_))
        for h, ps in enumerate(HPOS):
            if ps == s_ - 1: items.append(('H', h))
    slot_of = {it: n % NSLOT for n, it in enumerate(items)}

    def b_dma_ops(it, d):
        sl = slot_of[it]
        pre = [lambda: e(f"s_add_u32 m0, s{sMB}, {sl*BSLOT + d*BD}")]
        if it[0] == 'B':
            i, m, _ = steps[it[1]]
            if d == 0: pre.append(lambda: e(f"s_add_u32 s{sTB}, s{sWp+i}, {m*2097152}"))
            so = sTB
        else:
            so = sH + it[1]
        op = lambda: g.vm(f"buffer_load_dwordx4 v{vBd+d}, s[{SWT}:{SWT+3}], s{so} offen {opt.get('bsc', '')} lds", ev=(it, d))
        return pre, op

    def emit_dma(pre, op):
        for p in pre: p()
        if len(pre) < 2: e("s_nop 0")
        op()

    PRO = opt.get("pro", ['A0', 'B0', 'S', 'p0', 'w1', 'x1', 'x2', 'B1'])
    pro_b = 0; pro_a1 = False
    for tok in PRO:
        if tok == 'S': later_bases(); touch_setup()
        elif tok[0] == 'A':
            for n in range(9): emit_dma(*a_dma_ops(int(tok[1]), n))
            if tok == 'A1': pro_a1 = True
        elif tok[0] == 'B':
            assert int(tok[1]) == pro_b; pro_b += 1
            for d in range(4): emit_dma(*b_dma_ops(items[int(tok[1])], d))
        else: touch(tok[0], int(tok[1:]))()

    e(f"s_or_b32 s86, s86, 1")
    e(f"v_mov_b32 v{vNsrc}, s86"); e(f"v_mov_b32 v{vNsrc+1}, s87")
    NT, MT, PART = 89 if False else sHst, sHst + 1, sHst + 2
    e(f"s_lshl_b32 s{NT}, s{sG}, 1"); e(f"s_add_u32 s{NT}, s{NT}, s{sRole}")
    e(f"s_lshl_b32 s{MT}, s{sB}, 3"); e(f"s_add_u32 s{MT}, s{MT}, s{sT}")
    e(f"s_xor_b32 s{PART}, s2, 16")
    e(f"s_lshl_b32 s3, s{sW}, 10")
    e(f"v_lshlrev_b32 v{T5}, 4, v{LN}")
    e(f"v_add_u32 v{vAT}, s3, v{T5}")
    e(f"v_add_u32 v{vAT9}, s{sP0}, v{vAT}")
    e(f"s_mul_i32 s{sXsT}, s{MT}, 278528"); e(f"s_add_u32 s{sXsT}, s{sXsT}, {WS_XS}")
    e(f"v_mul_u32_u24 v{T0}, {ABLK}, v{RR}")
    e(f"v_lshl_add_u32 v{T0}, v{QQ}, 4, v{T0}")
    e(f"s_lshl_b32 s3, s{sW}, 6")
    e(f"v_add_u32 v{vAf}, s3, v{T0}")
    e(f"v_mul_u32_u24 v{T0}, {BD}, v{QQ}")
    e(f"v_bfe_u32 v{T1}, v0, 2, 2")
    e(f"v_lshl_add_u32 v{T0}, v{T1}, 7, v{T0}")
    e(f"v_add_u32 v{T0}, s{sMB}, v{T0}")
    e(f"v_and_b32 v{T1}, 3, v0")
    e(f"v_bfe_u32 v{T2}, v0, 3, 1")
    e(f"v_lshl_add_u32 v{T3}, v{T1}, 3, v{T0}")
    e(f"v_lshlrev_b32 v{T4}, 5, v{T2}")
    e(f"v_add_u32 v{vBe}, v{T3}, v{T4}")
    e(f"v_sub_u32 v{vBo}, v{T3}, v{T4}")
    e(f"v_lshlrev_b32 v{T2}, 1, v{T2}")
    e(f"v_xor_b32 v{T1}, v{T1}, v{T2}")
    e(f"v_lshl_add_u32 v{vBh}, v{T1}, 4, v{T0}")
    e(f"s_lshl_b32 s3, s{sW}, 11")
    e(f"v_add_u32 v{T0}, s3, v{T5}")
    e(f"s_lshl_b32 s3, s{NT}, 19")
    e(f"v_add_u32 v{vHs}, s3, v{T0}")
    e(f"s_lshl_b32 s{sP0}, s{sRole}, 1"); e(f"s_add_u32 s{sP0}, s{sP0}, s{sB}")
    e(f"s_lshl_b32 s3, s{sP0}, 16")
    e(f"s_lshl_b32 s{sP1}, s{sT}, 13"); e(f"s_add_u32 s3, s3, s{sP1}")
    e(f"s_lshl_b32 s{sP1}, s{sG}, 20"); e(f"s_add_u32 s3, s3, s{sP1}")
    e(f"v_add_u32 v{vHsSt}, s3, v{T0}")
    e(f"s_mov_b32 s{sHsO}, 0")
    e(f"s_lshl_b32 s{sP0}, s{sP0}, 17")
    e(f"s_lshl_b32 s3, s{sT}, 21"); e(f"s_add_u32 s{sH}, s3, s{sP0}")
    e(f"s_add_u32 s{sH+1}, s{sH}, {2<<19}")
    e(f"s_lshl_b32 s3, s{sRole}, 20")
    e(f"s_add_u32 s{sH+3}, s{sH}, {3<<19}"); e(f"s_sub_u32 s{sH+3}, s{sH+3}, s3")
    e(f"s_sub_u32 s{sH+2}, s{sH+3}, {2<<19}")
    e(f"s_cmp_lt_i32 s{sH+2}, 0")
    e(f"s_cselect_b32 s{sH+2}, {OOB}, s{sH+2}")
    e(f"s_lshl_b32 s3, s{NT}, 19"); e(f"s_lshl_b32 s{sP1}, s{sT}, 13"); e(f"s_add_u32 s3, s3, s{sP1}")
    e(f"s_lshl_b32 s{sP1}, s{sW}, 11"); e(f"s_add_u32 s3, s3, s{sP1}")
    e(f"s_and_b32 s{sP1}, s{NT}, 3"); e(f"s_lshl_b32 s{sP1}, s{sP1}, 2"); e(f"s_add_u32 s{sP1}, s{sP1}, s{sW}")
    e(f"s_mul_i32 s{sP1}, s{sP1}, 2176"); e(f"s_add_u32 s{sP1}, s{sP1}, s{sXsT}"); e(f"s_sub_u32 s{sP1}, s{sP1}, 2048")
    e(f"v_cmp_gt_u32 vcc, 33, v{LN}")
    e(f"v_mov_b32 v{T1}, s3"); e(f"v_mov_b32 v{T2}, s{sP1}"); e(f"v_mov_b32 v{T3}, {OOB}")
    e(f"v_cndmask_b32 v{T2}, v{T3}, v{T2}, vcc")
    e(f"v_cmp_gt_u32 vcc, 16, v{LN}")
    e(f"v_mov_b32 v{T4}, 34816")
    e(f"v_mov_b32 v{T3}, 65536")
    e(f"v_cndmask_b32 v{T2}, v{T2}, v{T1}, vcc")
    e(f"v_cndmask_b32 v235, v{T4}, v{T3}, vcc")
    e(f"v_lshl_add_u32 v{vTt}, v{LN}, 7, v{T2}")
    e(f"v_lshrrev_b32 v{T0}, 3, v{LN}")
    e(f"s_lshl_b32 s3, s{sW}, 3")
    e(f"v_add_u32 v{T0}, s3, v{T0}")
    e(f"v_and_b32 v{T1}, 7, v0")
    e(f"v_lshlrev_b32 v{T1}, 4, v{T1}")
    e(f"v_lshl_add_u32 v{vXsA}, v{T0}, 12, v{T1}")
    e(f"v_lshl_add_u32 v{vXsD}, v{T0}, 8, v{T1}")
    e(f"s_lshl_b32 s3, s{sW}, 1"); e(f"s_add_u32 s3, s3, s{sRole}")
    e(f"s_cmp_lg_u32 s3, 1"); e(f"s_cselect_b32 s3, {OOB}, 0")
    e(f"v_add_u32 v{vXsA5}, s3, v{vXsA}"); e(f"v_add_u32 v{vXsD5}, s3, v{vXsD}")
    e(f"s_lshl_b32 s3, s{sG}, 7"); e(f"s_add_u32 s{sXsS}, s{sTX}, s3")
    e(f"s_lshl_b32 s3, s{sRole}, 18"); e(f"s_add_u32 s{sXsS}, s{sXsS}, s3"); e(f"s_add_u32 s{sXsS}, s{sXsS}, 2048")
    e(f"s_lshr_b32 s3, s{sG}, 1"); e(f"s_mul_i32 s3, s3, 34816"); e(f"s_add_u32 s{sXsD}, s{sXsT}, s3")
    e(f"s_and_b32 s3, s{sG}, 1"); e("s_lshl_b32 s3, s3, 7"); e(f"s_add_u32 s{sXsD}, s{sXsD}, s3")
    e(f"s_lshl_b32 s3, s{sRole}, 14"); e(f"s_add_u32 s{sXsD}, s{sXsD}, s3")
    e(f"v_add_u32 v{vPW}, s{sMB}, v{T5}")
    e(f"s_lshl_b32 s3, s{sW}, 12"); e(f"s_add_u32 s{sP1}, s3, {BBASE}")
    e(f"v_add_u32 v{vRed}, s{sP1}, v{T5}")
    e(f"v_add_u32 v{vRed2}, {2*BRING}, v{vRed}")
    e(f"s_lshl_b32 s{sP1}, s2, 14"); e(f"s_add_u32 s{sP1}, s{sP1}, s3"); e(f"s_add_u32 s{sP1}, s{sP1}, {WS_RX}")
    e(f"v_add_u32 v{vRxSt}, s{sP1}, v{T5}")
    e(f"v_lshlrev_b32 v{T0}, 9, v{QQ}")
    e(f"v_lshl_add_u32 v{T1}, v{RR}, 4, v{T0}")
    e(f"s_add_u32 s{sP1}, s{sMB}, 16384")
    e(f"v_add_u32 v{vLE}, s{sP1}, v{T1}")
    e(f"v_add_u32 v{vLK}, {BBASE+16384}, v{T0}")
    e(f"s_lshl_b32 s{sP1}, s{PART}, 14"); e(f"s_add_u32 s{sP1}, s{sP1}, {WS_RX}")
    e(f"v_add_u32 v{vGK}, s{sP1}, v{T0}")
    e(f"v_and_b32 v{T2}, 31, v0")
    e(f"v_lshrrev_b32 v{T3}, 2, v{T2}"); e(f"v_lshlrev_b32 v{T3}, 8, v{T3}")
    e(f"v_and_b32 v{T4}, 3, v0"); e(f"v_lshl_add_u32 v{T3}, v{T4}, 2, v{T3}")
    e(f"v_add_u32 v{vGKc}, s{sP1}, v{T3}")
    e(f"v_add_u32 v{vLKc}, {BBASE+16384}, v{T3}")
    e(f"s_add_u32 s{sP1}, s{sP1}, s3")
    e(f"v_add_u32 v{vGE}, s{sP1}, v{T1}")
    e(f"s_cmp_lt_u32 s{sW}, 3")
    e(f"s_mov_b32 s3, {(-3*BRING+16) & 0xffffffff}"); e(f"s_mov_b32 s{sP1}, {(-12288+16) & 0xffffffff}")
    e(f"s_cselect_b32 s3, {BRING}, s3")
    e(f"s_cselect_b32 s{sP1}, 4096, s{sP1}")
    e(f"s_cmp_eq_u32 s{sRole}, 0")
    e(f"s_cselect_b32 s3, s3, 2048")
    e(f"s_cselect_b32 s{sP1}, 2048, s{sP1}")
    e(f"s_cselect_b32 s{sP0}, 2048, 0")
    e(f"v_add_u32 v{vLO1}, s3, v{vLE}"); e(f"v_add_u32 v{vGO1}, s{sP1}, v{vGE}"); e(f"v_add_u32 v{vLO0}, s{sP0}, v{vLE}")
    e(f"s_cselect_b32 s{sP0}, 0, 2048")
    e(f"v_add_u32 v{vGO0}, s{sP0}, v{vGE}")
    e(f"s_lshl_b32 s3, s{sB}, 4"); e(f"s_add_u32 s3, s3, s{NT}"); e("s_lshl_b32 s3, s3, 11"); e(f"s_add_u32 s3, s3, {WS_ST}")
    e(f"v_lshlrev_b32 v{T3}, 3, v{T2}")
    e(f"v_bfe_u32 v{T4}, v0, 5, 1")
    e(f"v_lshl_add_u32 v{T1}, v{T4}, 10, v{T3}")
    e(f"v_add_u32 v{vStP}, s3, v{T1}")
    e(f"s_lshl_b32 s{sP1}, s{sT}, 8"); e(f"s_add_u32 s3, s3, s{sP1}")
    e(f"v_add_u32 v{T3}, s3, v{T3}")
    e(f"v_mov_b32 v{T1}, {OOB}")
    e("v_cmp_gt_u32 vcc, 32, v0")
    e(f"s_lshl_b32 s3, s2, 6"); e(f"s_add_u32 s3, s3, {WS_FL+8192}")
    e(f"v_cndmask_b32 v{vStSt}, v{T1}, v{T3}, vcc")
    e(f"v_mov_b32 v{T3}, s3")
    e("v_cmp_eq_u32 vcc, 0, v0")
    e(f"s_lshl_b32 s3, s{PART}, 6"); e(f"s_add_u32 s3, s3, {WS_FL+8192}")
    e(f"v_cndmask_b32 v{vFlSt}, v{T1}, v{T3}, vcc")
    e(f"v_cndmask_b32 v{vAtom}, v{T1}, 0, vcc")
    e(f"v_mov_b32 v{vFlP}, s3")
    e(f"s_lshl_b32 s3, s{sG}, 9"); e(f"s_add_u32 s3, s3, {WS_FL}")
    e(f"s_lshl_b32 s{sP1}, s{MT}, 8"); e(f"s_add_u32 s{sP1}, s{sP1}, {WS_FL+4096}")
    e(f"v_lshlrev_b32 v{T3}, 4, v{T2}"); e(f"v_add_u32 v{T3}, s3, v{T3}")
    e(f"v_cmp_gt_u32 vcc, 32, v{LN}")
    e(f"v_lshlrev_b32 v{vPl}, 4, v{RR}"); e(f"v_add_u32 v{vPl}, s{sP1}, v{vPl}")
    e(f"v_cndmask_b32 v{vPl}, v{vPl}, v{T3}, vcc")
    e(f"s_lshl_b32 s{sP0}, s{NT}, 4"); e(f"s_add_u32 s{sP1}, s{sP1}, s{sP0}")
    e(f"s_lshl_b32 s{sP0}, s{sT}, 1"); e(f"s_add_u32 s{sP0}, s{sP0}, s{sRole}"); e(f"s_lshl_b32 s{sP0}, s{sP0}, 1")
    e(f"s_add_u32 s{sP0}, s{sP0}, s{sB}"); e(f"s_lshl_b32 s{sP0}, s{sP0}, 4"); e(f"s_add_u32 s3, s3, s{sP0}")
    e("v_cmp_eq_u32 vcc, 1, v0")
    e(f"v_add_u32 v{vSig}, s3, v{vAtom}"); e(f"v_mov_b32 v{T3}, s{sP1}")
    e(f"v_cndmask_b32 v{vSig}, v{vSig}, v{T3}, vcc")
    e("s_cmp_eq_u32 s2, 0"); e(f"s_cselect_b32 s3, 0, {OOB}")
    e(f"v_or_b32 v{vNst}, s3, v{vAtom}")
    g.vm(f"buffer_store_dwordx2 {vr(vNsrc,2)}, v{vNst}, s[{SDBG}:{SDBG+3}], 0 offen sc1")
    f254 = "0x%08x" % f2u(254.0 / 1985.0); f207 = "0x%08x" % f2u(207.0 / 1985.0)
    e(f"v_cmp_eq_u32 vcc, 1, v{T4}")
    e(f"v_mov_b32 v{T1}, {f254}"); e(f"v_mov_b32 v{T3}, {f207}")
    e(f"v_cndmask_b32 v{vF3}, v{T1}, v{T3}, vcc")
    e(f"s_lshl_b32 s3, s{sW}, 8")
    e(f"v_lshrrev_b32 v{T1}, 2, v{RR}"); e(f"v_lshlrev_b32 v{T1}, 4, v{T1}")
    e(f"v_lshl_add_u32 v{T1}, v{QQ}, 6, v{T1}")
    e(f"s_add_u32 s{sP1}, s3, {ST_OFF}")
    e(f"v_add_u32 v{vSW}, s{sP1}, v{T1}")
    e(f"v_lshrrev_b32 v{T1}, 3, v{T2}"); e(f"v_lshlrev_b32 v{T1}, 6, v{T1}")
    e(f"v_and_b32 v{T3}, 7, v0"); e(f"v_lshl_add_u32 v{T1}, v{T3}, 2, v{T1}")
    e(f"v_add_u32 v{vSR}, {ST_OFF}, v{T1}")
    e(f"s_add_u32 s{sP1}, s3, {AB_OFF}")
    e(f"v_lshlrev_b32 v{T1}, 2, v{T2}"); e(f"v_add_u32 v{vABw}, s{sP1}, v{T1}")
    e(f"v_lshlrev_b32 v{T1}, 5, v{QQ}"); e(f"v_add_u32 v{vABr}, s{sP1}, v{T1}")
    e(f"s_lshl_b32 s3, s{sW}, 2")
    e(f"v_lshlrev_b32 v{T1}, 4, v{RR}"); e(f"v_add_u32 v{T1}, s3, v{T1}")
    e(f"v_lshlrev_b32 v{T3}, 4, v{QQ}"); e(f"v_lshl_add_u32 v{vOut}, v{T1}, 10, v{T3}")
    e(f"s_cmp_eq_u32 s{sT}, 7")
    e(f"s_mov_b32 s{sP1}, 254"); e(f"s_mov_b32 s{sInvN}, 0x{f2u(1.0/254):08x}")
    e(f"s_cselect_b32 s{sP1}, 207, s{sP1}")
    e(f"s_cselect_b32 s{sInvN}, 0x{f2u(1.0/207):08x}, s{sInvN}")
    for k in range(4):
        e(f"v_add_u32 v{T3}, {k}, v{T1}")
        e(f"v_cmp_gt_u32 s[{sMask+2*k}:{sMask+2*k+1}], s{sP1}, v{T3}")
    e(f"s_mul_i32 s3, s{sB}, 1985"); e(f"s_mul_i32 s{sP0}, s{sT}, 254"); e(f"s_add_u32 s3, s3, s{sP0}")
    e(f"s_add_u32 s{sP1}, s{sP1}, s3"); e(f"s_lshl_b32 s{SOUT+2}, s{sP1}, 10")
    e(f"s_lshl_b32 s3, s3, 10"); e(f"s_lshl_b32 s{sP0}, s{NT}, 6"); e(f"s_add_u32 s{sOutO}, s3, s{sP0}")
    vGB, vM1 = 236, 238
    e(f"v_lshlrev_b32 v{T1}, 1, v{T2}"); e(f"v_add_u32 v{vGB}, s{sP0}, v{T1}")
    e(f"s_lshl_b32 s3, s{sRole}, 19")
    e(f"s_xor_b32 s{sP1}, s3, {1<<19}")
    e(f"s_mov_b32 s{sHst}, s3"); e(f"s_mov_b32 s{sHst+1}, s{sP1}")
    e(f"s_add_u32 s{sHst+2}, s3, {1<<18}"); e(f"s_add_u32 s{sHst+3}, s{sP1}, {1<<18}")
    e(f"s_lshr_b32 s3, s{sG}, 2"); e("s_lshl_b32 s3, s3, 11")
    e(f"s_add_u32 s{sXsS1}, s{sXsS}, 1024"); e(f"s_sub_u32 s{sXsS1}, s{sXsS1}, s3")
    e(f"v_mov_b32 v{vM1}, -1"); e(f"v_mov_b32 v{vM1+1}, -1")
    e(f"v_mov_b32 v{vTi}, v235")
    c0 = -2.0 * math.log2(math.e) * math.sqrt(2.0 / math.pi); c1 = c0 * 0.044715
    e(f"s_mov_b32 s{sC}, 0x{f2u(c1):08x}"); e(f"s_mov_b32 s{sC+1}, 0x{f2u(c1):08x}")
    e(f"s_mov_b32 s{sC+2}, 1.0"); e(f"s_mov_b32 s{sC+3}, 1.0")
    e(f"s_mov_b32 s{sC+4}, {f254}"); e(f"s_mov_b32 s{sC+5}, 0x{f2u(1.0/1985):08x}")

    free_af = list(range(NAF)); af_slot = {}
    def af_read(i, sp):
        def fn():
            assert free_af, "A frag pool exhausted"
            k = free_af.pop(0); af_slot[(i, sp)] = k
            b = AF0 + 4 * k
            off = (i & 1) * ABUF + (sp >> 3) * ABLK + (sp & 7) * 256
            g.lg(f"ds_read_b128 {vr(b,4)}, v{vAf} offset:{off}", dst=R('v', b, 4), tag=('F', i, sp), ev=('Fr', i, sp))
        return fn
    def tr_reads(it):
        ops = []
        sl = slot_of[it]
        for cb in range(4):
            for t in range(2):
                if it[0] == 'B':
                    b = WF0 + 16 * (it[1] & 1) + 4 * cb + 2 * t
                    v = vBe if cb % 2 == 0 else vBo
                    off = sl * BSLOT + t * 512 + cb * 32
                    tag = ('W', it[1], cb)
                else:
                    b = TMP + 16 * (it[1] & 1) + 4 * cb + 2 * t
                    v = vBh
                    off = sl * BSLOT + t * 512 + (cb >> 1) * 64 + (cb & 1) * 8
                    tag = ('Hf', it[1], cb)
                ops.append(lambda b=b, v=v, off=off, tag=tag: g.lg(f"ds_read_b64_tr_b16 {vr(b,2)}, v{v} offset:{off}", dst=R('v', b, 2), tag=tag, ev=('Tr', it)))
        return ops
    freed = {}
    for s_ in range(NUV - 1):
        g0 = steps[s_][2]
        it = ('B', s_ + 1)
        at(g0, lambda it=it: g.wait(vm=g.ev[(it, 3)]))
        for k, fn in enumerate(tr_reads(it)): at(g0 + 1 + k, fn)
        at(g0 + 13, lambda it=it: g.wait(lg=g.ev[('Tr', it)]))
        freed[it] = g0 + 13
        for h, ps in enumerate(HPOS):
            if ps == s_:
                it = ('H', h)
                at(g0 + 14, lambda it=it: g.wait(vm=g.ev[(it, 3)]))
                for k, fn in enumerate(tr_reads(it)): at(g0 + 15 + k, fn)
                at(g0 + 28, lambda it=it: g.wait(lg=g.ev[('Tr', it)]))
                freed[it] = g0 + 28
    freed[('B', 0)] = -1
    bar_extra_vm = defaultdict(list); bar_extra_lg = defaultdict(list)
    def barrier(i):
        def fn():
            vm = [g.ev[('A', i + 1, 8)]] if i < 15 else []
            vm += [g.ev[k] for k in bar_extra_vm[i]]
            lg = [g.ev[('Fr', i, PH_N[i] + 6)]] + [g.ev[k] for k in bar_extra_lg[i]]
            g.wait(vm=max(vm) if vm else None, lg=max(lg))
            e("s_barrier")
            stamp(i)
        return fn
    for i in range(15):
        gaps[bar[i]].insert(0, barrier(i))
    for i in range(16):
        n = PH_N[i]; sl = SL[i]
        k = n - 1
        span = (n - 2) * sl - 12
        for u in range(k):
            gp = P0[i] + (9 if sl == 32 else 1) + (u * span) // k
            spread([af_read(i, 8 + u)], gp, limit=bar[i] - 4)
        if i < 15:
            for u in range(8):
                gp = bar[i] + 9 * (sl == 32) + 1 + (u * (2 * sl - 18)) // 8
                spread([af_read(i + 1, u)], gp, limit=P0[i + 1] - 4)

    vq = []
    for n_, it in enumerate(items):
        if n_ < pro_b: continue
        fr = freed[items[n_ - NSLOT]] if n_ >= NSLOT else -1
        s_need = it[1] - 1 if it[0] == 'B' else HPOS[it[1]]
        dl = steps[s_need][2] + (14 if it[0] == 'H' else 0)
        for d in range(4):
            pre, op = b_dma_ops(it, d)
            vq.append((fr + 1 + len(pre), dl + d * 0.1, pre, op, 'B'))
    A_OFF = opt.get("a_off", 64); A_SP = opt.get("a_sp", 14); A1_OFF = opt.get("a1_off", 40)
    for i in range(1, 16):
        if i == 1 and pro_a1: continue
        for n in range(9):
            pre, op = a_dma_ops(i, n)
            if i == 1: ea = A1_OFF + n * A_SP
            elif i < 8: ea = bar[i - 2] + 1 + len(pre) + A_OFF + n * A_SP
            else: ea = bar[i - 2] + 1 + len(pre)
            vq.append((ea, ea + 1 if i < 8 else (bar[i - 1] - 400 + n * 0.1 if i < 9 else bar[i - 1] - 60 + n * 0.1), pre, op))
    TCH = opt.get("tch")
    if TCH is None:
        TCH = []
        for i in range(8):
            s0 = sum(PH_N[:i])
            if i + 1 < 8: TCH.append((s0 + opt.get("p_step", 1), 'p', i + 1))
            if i + 2 < 8: TCH.append((s0 + opt.get("l_step", 5), 'w', i + 2))
            if i + 3 < 8: TCH.append((s0 + opt.get("l_step", 5), 'x', i + 3))
    for (st_, kind, ph) in TCH:
        ea = steps[st_][2] + opt.get("t_q", 17)
        vq.append((ea, ea + 0.5, [], touch(kind, ph)))
    m0_ = steps[opt.get("misc", 9)][2]
    vq.append((m0_, m0_ + 60, [], lambda: g.vm(f"global_load_ushort v{vBia}, v{vGB}, s[{sPtrB}:{sPtrB+1}]", dst=R('v', vBia, 1), tag='bia')))
    vq.append((m0_, m0_ + 60, [], lambda: g.vm(f"global_load_ushort v{vGam}, v{vGB}, s[{sPtrG}:{sPtrG+1}]", dst=R('v', vGam, 1), tag='gam')))
    vq.append((m0_, m0_ + 60, [], lambda: g.vm(f"global_load_ushort v{vBet}, v{vGB}, s[{sPtrBe}:{sPtrBe+1}]", dst=R('v', vBet, 1), tag='bet')))
    vq.append((m0_, m0_ + 60, [], lambda: g.vm(f"buffer_store_dwordx2 v[{vM1}:{vM1+1}], v{vStSt}, s[{SWS}:{SWS+3}], 0 offen sc1", ev='clear0')))
    NR = 8
    poll1_chk = bar[opt.get('pa', 5)] - 8
    poll1b_chk = bar[opt.get('pb', 9)] - 8
    for ts in range(64):
        st = NUV + ts
        if ts >= NR - 1:
            ea = steps[st - (NR - 1)][2]
            if ts >= 32: assert ea > poll1b_chk + 2
        else:
            ea = max(poll1_chk + 2, steps[NUV - 1][2] - (NR - 1 - ts) * 16 - 64)
        for cb in range(2):
            b = 192 + 8 * (ts % NR) + 4 * cb
            pre = []
            if cb == 0 and ts > 0: pre.append(lambda: e(f"s_add_u32 s{sHsO}, s{sHsO}, 8192"))
            op = lambda b=b, ts=ts, cb=cb: g.vm(f"buffer_load_dwordx4 {ar(b,4)}, v{vHs}, s[{SWS}:{SWS+3}], s{sHsO} offen offset:{cb*1024} {TSC}", dst=R('a', b, 4), tag=('Hs', ts, cb))
            vq.append((ea + len(pre), steps[st][2] + cb * 0.1, pre, op, 'Hs'))

    XA = TMP + 32
    TT = TMP + 72
    XSL = opt.get("xs_load", [17, 47]); XSV = opt.get("xs_valu", [19, 49])
    for p in range(2):
        xs_start = steps[XSL[p]][2]
        for n in range(3):
            for ab in range(2):
                b = XA + 8 * n + 4 * ab
                v = vXsA if n < 2 else vXsA5
                pre = [lambda n=n, p=p: e(f"s_add_u32 s{sTX}, s{(sXsS, sXsS1)[p]}, {n*131072}")] if ab == 0 else []
                op = lambda b=b, v=v, n=n, ab=ab, p=p: g.vm(f"buffer_load_dwordx4 {vr(b,4)}, v{v}, s[{SX}:{SX+3}], s{sTX} offen offset:{ab*2048}", dst=R('v', b, 4), tag=('Xs', p, n, ab))
                vq.append((xs_start + len(pre), xs_start + opt.get('xs_dl', 60) + n + ab * 0.1, pre, op, 'Xs'))
    tcount = [0]
    def addpair(a, b, ta, tb, tres):
        t = TT + 4 * (tcount[0] & 1); tcount[0] += 1
        return [
            lambda: g.valu(f"v_lshlrev_b32 v{t}, 16, v{a}", reads=[(R('v', a, 1), ta)]),
            lambda: g.valu(f"v_lshlrev_b32 v{t+1}, 16, v{b}", reads=[(R('v', b, 1), tb)]),
            lambda: g.valu(f"v_and_b32 v{t+2}, 0xffff0000, v{a}", reads=[(R('v', a, 1), ta)]),
            lambda: g.valu(f"v_and_b32 v{t+3}, 0xffff0000, v{b}", reads=[(R('v', b, 1), tb)]),
            lambda: g.valu(f"v_add_f32 v{t}, v{t}, v{t+1}"),
            lambda: g.valu(f"v_add_f32 v{t+2}, v{t+2}, v{t+3}"),
            lambda: g.valu(f"v_cvt_pk_bf16_f32 v{a}, v{t}, v{t+2}", writes=R('v', a, 1), wtag=tres),
        ]
    SIG = opt.get("sig", [3, 7]); NOST = opt.get("nost", 0)
    for p in range(2):
        pre_store_evs = []
        cur = steps[XSV[p]][2]
        for n in range(3):
            ops = []
            for d in range(4):
                ops += addpair(XA + 8 * n + d, XA + 8 * n + 4 + d, ('Xs', p, n, 0), ('Xs', p, n, 1), ('XsR', p, n))
            cur = spread(ops, cur, stride=0)
            v = vXsD if n < 2 else vXsD5
            pre = [lambda n=n, p=p: e(f"s_add_u32 s{sP0}, s{sXsD}, {n*8192 + p*4*34816}")]
            op = lambda n=n, v=v, p=p: g.vm(f"buffer_store_dwordx4 {vr(XA+8*n,4)}, v{v}, s[{SWS}:{SWS+3}], s{sP0} offen {STSC}", reads=R('v', XA + 8 * n, 4), rtag=('XsR', p, n), ev=('XsSt', p, n))
            if NOST: op = lambda n=n, p=p: g.ev.__setitem__(('XsSt', p, n), g.vi)
            vq.append((cur + 2, cur + 30, pre, op)); pre_store_evs.append(('XsSt', p, n))
            cur += opt.get('xs_gap', 0)
        cur = max(cur, freed[('H', 2 * p + 1)] + 1)
        for cb in range(4):
            ops = []
            for d in range(4):
                ops += addpair(TMP + 4 * cb + d, TMP + 16 + 4 * cb + d, ('Hf', 2 * p, cb), ('Hf', 2 * p + 1, cb), ('HsR', p, cb))
            cur = spread(ops, cur, stride=0)
            so = sHst + 2 * p + (cb >> 1)
            op = lambda cb=cb, so=so, p=p: g.vm(f"buffer_store_dwordx4 {vr(TMP+4*cb,4)}, v{vHsSt}, s[{SWS}:{SWS+3}], s{so} offen offset:{(cb&1)*1024} {STSC}", reads=R('v', TMP + 4 * cb, 4), rtag=('HsR', p, cb), ev=('HsSt', p, cb))
            if NOST: op = lambda cb=cb, p=p: g.ev.__setitem__(('HsSt', p, cb), g.vi)
            vq.append((cur + 1, cur + 2, [], op)); pre_store_evs.append(('HsSt', p, cb))
            if cb < 3: cur += opt.get('hs_gap', 0)
        info_pre.append((p, cur, bar[SIG[p]]))
        bar_extra_vm[SIG[p]] += pre_store_evs + (['clear0'] if p == 0 else [])
        vq.append((bar[SIG[p]] + 1, bar[SIG[p]] + 2, [], lambda p=p: g.vm(f"buffer_store_dwordx2 {vr(vNon,2)}, v{vSig}, s[{SWS}:{SWS+3}], 0 offen offset:{8*p} sc1", reads=R('v', vNon, 2), rtag='non')))
    slow = []
    def check(name, load_txt, dst, ev1, ev2, br_fail, br_ok):
        def f1():
            g.need(R('v', dst, 2), name)
            for t in ev1: e(t)
        def f2():
            for t in ev2: e(t)
            e(f"{br_fail} L_slow_{name}"); g.out.append(f"L_back_{name}:")
        slow.append((name, load_txt, ev1, ev2, br_ok))
        return f1, f2
    def poll(nm, ld, chk_, lead):
        vq.append((chk_ - lead, chk_ - lead + 1, [], lambda: g.vm(ld, dst=R('v', vPoll, 2), tag=nm)))
        f1, f2 = check(nm, ld, vPoll, [f"v_cmp_ne_u64 vcc, s[{sNon}:{sNon+1}], {vr(vPoll,2)}"], [], "s_cbranch_vccnz", "s_cbranch_vccz")
        at(chk_ - 2, f1); at(chk_, f2)
    nchk = steps[opt.get("non", 13)][2]
    ldn = f"buffer_load_dwordx2 {vr(vNon,2)}, off, s[{SDBG}:{SDBG+3}], 0 sc1"
    vq.append((nchk - 100, nchk - 99, [], lambda: g.vm(ldn, dst=R('v', vNon, 2), tag='non')))
    f1, f2 = check('non', ldn, vNon, [f"v_readfirstlane_b32 s{sNon}, v{vNon}", f"v_readfirstlane_b32 s{sNon+1}, v{vNon+1}"], [f"s_cmp_lg_u32 s{sNon}, 0"], "s_cbranch_scc0", "s_cbranch_scc1")
    at(nchk - 2, f1); at(nchk, f2)
    for (nm, chk_, off) in (('p1', poll1_chk, 0), ('p1b', poll1b_chk, 8)):
        poll(nm, f"buffer_load_dwordx2 {vr(vPoll,2)}, v{vPl}, s[{SWS}:{SWS+3}], 0 offen offset:{off} sc1", chk_, opt.get('poll_lead', 100))
    if opt.get("tt", 1):
        for i in range(8, 16):
            if i < 10: ea = poll1_chk + 4 + (i - 8) * opt.get("tt_sp", 64)
            else: ea = P0[i - 2] + opt.get("tt_off", 8)
            if i >= 12: ea = max(ea, poll1b_chk + 4)
            pre = [lambda: e(f"v_add_u32 v{vTt}, v{vTi}, v{vTt}")] if i > 8 else []
            vq.append((ea, ea + 0.5, pre, lambda: g.vm(f"buffer_load_dword v{vTd}, v{vTt}, s[{SWS}:{SWS+3}], 0 offen {opt.get('ttsc', 'sc1')}"), 'TT'))

    RED = TMP; EF = 216; OP = 232; RC = WF0; SS = WF0
    def pwrite(acc_of, ev):
        ops = []
        for j in range(8):
            for c in range(2):
                a = acc_of(j, c)
                ops.append(lambda a=a, j=j, c=c: g.lg(f"ds_write_b128 v{vPW}, {ar(a,4)} offset:{(2*j+c)*1024}", ev=ev))
        return ops
    def pread(nm):
        ops = []
        for blk in range(4):
            for w2 in range(4):
                b = RED + 16 * w2 + 4 * blk
                v = vRed if w2 < 2 else vRed2
                off = (w2 & 1) * BRING + blk * 1024
                ops.append(lambda b=b, v=v, off=off, blk=blk, w2=w2: g.lg(f"ds_read_b128 {vr(b,4)}, v{v} offset:{off}", dst=R('v', b, 4), tag=(nm, blk, w2), ev=nm + 'r'))
        return ops
    def padd(nm, blk):
        ops = []
        for stage in range(3):
            for d in range(4):
                a0 = RED + 4 * blk + d
                if stage == 0: ops.append(lambda a0=a0: g.valu(f"v_add_f32 v{a0}, v{a0}, v{a0+16}", reads=[(R('v', a0, 1), (nm, blk, 0)), (R('v', a0 + 16, 1), (nm, blk, 1))]))
                elif stage == 1: ops.append(lambda a0=a0: g.valu(f"v_add_f32 v{a0+32}, v{a0+32}, v{a0+48}", reads=[(R('v', a0 + 32, 1), (nm, blk, 2)), (R('v', a0 + 48, 1), (nm, blk, 3))]))
                else: ops.append(lambda a0=a0: g.valu(f"v_add_f32 v{a0}, v{a0}, v{a0+32}", writes=R('v', a0, 1), wtag=(nm + 's', blk)))
        return ops
    spread(pwrite(lambda j, c: (j * 4 + 2 + c) * 4, 'Wf'), P0[8] + 6, stride=4, limit=bar[8] - 4)
    bar_extra_lg[8].append('Wf')
    cur = spread(pread('Rf'), bar[8] + 2, stride=3)
    cur += 8
    for blk in range(4):
        cur = spread(padd('Rf', blk), cur, stride=0)
        op = lambda blk=blk: g.vm(f"buffer_store_dwordx4 {vr(RED+4*blk,4)}, v{vRxSt}, s[{SWS}:{SWS+3}], 0 offen offset:{blk*1024} {RXSC}", reads=R('v', RED + 4 * blk, 4), rtag=('Rfs', blk), ev=('RxSt', blk))
        vq.append((cur + 1, cur + 2, [], op))
    assert cur < bar[9] - 8
    bar_extra_lg[9].append('Rfr')
    spread(pwrite(lambda j, c: (j * 4 + c) * 4, 'Wo'), bar[9] + 2, stride=4, limit=bar[10] - 4)
    bar_extra_lg[10].append('Wo')
    bar_extra_vm[10] += [('RxSt', b) for b in range(4)]
    vq.append((bar[10] + 1, bar[10] + 2, [], lambda: g.vm(f"buffer_store_dwordx2 {vr(vNon,2)}, v{vFlSt}, s[{SWS}:{SWS+3}], 0 offen sc1", reads=R('v', vNon, 2), rtag='non')))
    cur = spread(pread('Ro'), bar[10] + 2, stride=3)
    cur += 8
    for blk in range(4):
        cur = spread(padd('Ro', blk), cur, stride=0)
        cur = spread([lambda blk=blk: g.lg(f"ds_write_b128 v{vPW}, {vr(RED+4*blk,4)} offset:{16384+blk*1024}", reads=R('v', RED + 4 * blk, 4), rtag=('Ros', blk), ev='Wr')], cur + 1)
    assert cur < bar[11] - 4
    bar_extra_lg[11].append('Wr')
    ops = []
    for jj in range(2):
        for hf in range(2):
            ops.append(lambda jj=jj, hf=hf: g.lg(f"ds_read_b128 {vr(EF+8*jj+4*hf,4)}, v{vLE} offset:{jj*2048+hf*256}", dst=R('v', EF + 8 * jj + 4 * hf, 4), tag='LE'))
            ops.append(lambda jj=jj, hf=hf: g.lg(f"ds_read_b128 {vr(OP+8*jj+4*hf,4)}, v{(vLO0,vLO1)[jj]} offset:{hf*256}", dst=R('v', OP + 8 * jj + 4 * hf, 4), tag='LO'))
    for hf in range(2):
        ops.append(lambda hf=hf: g.lg(f"ds_read_b128 {vr(RED+4*hf,4)}, v{vLK} offset:{hf*256}", dst=R('v', RED + 4 * hf, 4), tag='LK'))
    ops.append(lambda: g.lg(f"ds_read_b32 v{vKc}, v{vLKc}", dst=R('v', vKc, 1), tag='LKc'))
    spread(ops, bar[11] + 2, stride=3)
    p2 = bar[12] + opt.get("p2", 0)
    c2 = p2 + 72
    poll('p2', f"buffer_load_dwordx2 {vr(vPoll,2)}, v{vFlP}, s[{SWS}:{SWS+3}], 0 offen sc1", c2, 72)
    k = 0
    for jj in range(2):
        for hf in range(2):
            vq.append((c2 + 1, c2 + 2 + k, [], lambda jj=jj, hf=hf: g.vm(f"buffer_load_dwordx4 {vr(RC+8*jj+4*hf,4)}, v{vGE}, s[{SWS}:{SWS+3}], 0 offen offset:{jj*2048+hf*256} sc1", dst=R('v', RC + 8 * jj + 4 * hf, 4), tag='GE'))); k += 8
            vq.append((c2 + 1, c2 + 2 + k, [], lambda jj=jj, hf=hf: g.vm(f"buffer_load_dwordx4 {vr(RC+16+8*jj+4*hf,4)}, v{(vGO0,vGO1)[jj]}, s[{SWS}:{SWS+3}], 0 offen offset:{hf*256} sc1", dst=R('v', RC + 16 + 8 * jj + 4 * hf, 4), tag='GO'))); k += 8
    for hf in range(2):
        vq.append((c2 + 1, c2 + 2 + k, [], lambda hf=hf: g.vm(f"buffer_load_dwordx4 {vr(RED+8+4*hf,4)}, v{vGK}, s[{SWS}:{SWS+3}], 0 offen offset:{hf*256} sc1", dst=R('v', RED + 8 + 4 * hf, 4), tag='GK'))); k += 8
    vq.append((c2 + 1, c2 + 2 + k, [], lambda: g.vm(f"buffer_load_dword v{vKc2}, v{vGKc}, s[{SWS}:{SWS+3}], 0 offen sc1", dst=R('v', vKc2, 1), tag='GKc')))
    ops = []
    for d in range(8):
        ops.append(lambda d=d: g.valu(f"v_add_f32 v{RED+d}, v{RED+d}, v{RED+8+d}", reads=[(R('v', RED + d, 1), 'LK'), (R('v', RED + 8 + d, 1), 'GK')], writes=R('v', RED + d, 1), wtag='K'))
    for d in range(16):
        ops.append(lambda d=d: g.valu(f"v_add_f32 v{EF+d}, v{EF+d}, v{RC+d}", reads=[(R('v', EF + d, 1), 'LE'), (R('v', RC + d, 1), 'GE')]))
        ops.append(lambda d=d: g.valu(f"v_sub_f32 v{OP+d}, -v{OP+d}, v{RC+16+d}", reads=[(R('v', OP + d, 1), 'LO'), (R('v', RC + 16 + d, 1), 'GO')]))
    for d in range(16):
        ops.append(lambda d=d: g.valu(f"v_sub_f32 v{EF+d}, v{EF+d}, v{RED+(d&7)}", reads=[(R('v', RED + (d & 7), 1), 'K')]))
        ops.append(lambda d=d: g.valu(f"v_sub_f32 v{OP+d}, v{OP+d}, v{RED+(d&7)}"))
    ops.append(lambda: g.valu(f"v_add_f32 v{vKc}, v{vKc}, v{vKc2}", reads=[(R('v', vKc, 1), 'LKc'), (R('v', vKc2, 1), 'GKc')]))
    ops.append(lambda: g.valu(f"v_lshlrev_b32 v{vBia}, 16, v{vBia}", reads=[(R('v', vBia, 1), 'bia')]))
    ops.append(lambda: g.valu(f"v_lshlrev_b32 v{vGam}, 16, v{vGam}", reads=[(R('v', vGam, 1), 'gam')]))
    ops.append(lambda: g.valu(f"v_lshlrev_b32 v{vBet}, 16, v{vBet}", reads=[(R('v', vBet, 1), 'bet')]))
    ops.append(lambda: g.valu(f"v_add_f32 v{vKc}, v{vKc}, v{vBia}"))
    for d in range(16):
        mk = sMask + 2 * (2 * (d >> 3))
        ops.append(lambda d=d, mk=mk: g.valu(f"v_cndmask_b32 v{EF+d}, 0, v{EF+d}, s[{mk}:{mk+1}]"))
    for d in range(8):
        ops.append(lambda d=d: g.valu(f"v_add_f32 v{SS+d}, v{EF+d}, v{EF+8+d}"))
        ops.append(lambda d=d: g.valu(f"v_mul_f32 v{SS+8+d}, v{EF+d}, v{EF+d}"))
    for d in range(8):
        ops.append(lambda d=d: g.valu(f"v_fmac_f32 v{SS+8+d}, v{EF+8+d}, v{EF+8+d}"))
    for d in range(2):
        ops.append(lambda d=d: g.valu(f"v_mov_b32 v{252+d}, 0x{f2u(c0):08x}"))
    comb_start = c2 + opt.get("comb", 150)

    vq = [t if len(t) == 5 else t + (None,) for t in vq]
    chain_next = defaultdict(int); seq = {}
    cnt = defaultdict(int)
    for n_, t in enumerate(vq):
        if t[4] is not None:
            seq[n_] = cnt[t[4]]; cnt[t[4]] += 1
    pending = sorted(range(len(vq)), key=lambda n_: (vq[n_][0], vq[n_][1]))
    cur = 0; lastg = -1
    while pending:
        win = [n_ for n_ in pending[:60] if vq[n_][4] is None or seq[n_] == chain_next[vq[n_][4]]]
        cands = [n_ for n_ in win if vq[n_][0] <= cur]
        if not cands:
            cur = max(cur + 1, min(vq[n_][0] for n_ in win)); continue
        n_ = min(cands, key=lambda n_: vq[n_][1])
        pending.remove(n_)
        ea, dl, pre, op, ch = vq[n_]
        if ch is not None: chain_next[ch] += 1
        gp = max(cur, lastg + 1 + len(pre))
        for k_, p in enumerate(pre):
            at(gp - len(pre) + k_, p)
        at(gp, op)
        lastg = gp
        cur = gp + (SP_UV if gp < P0[8] - 200 else SP_T)
    last = spread(ops, comb_start, stride=0)
    assert last < NM - 20, f"combine too late {last} {NM}"
    lastst = steps[-1][2]
    tw = pwrite(lambda j, c: 128 + (j * 2 + c) * 4, 'Wt')
    tail_w = []
    for k_, fn in enumerate(tw):
        gp = lastst + k_ + 9
        if gp < NM - 1: at(gp, fn)
        else: tail_w.append(fn)

    g.cur = -1
    g.mute = opt.get('mute', 0); g.mute_until = P0[8]
    g.wait(vm=g.ev[('A', 0, 8)])
    e("s_barrier")
    stamp('pro1')
    for u in range(8): af_read(0, u)()
    g.wait(vm=g.ev[(('B', 0), 3)])
    for fn in tr_reads(('B', 0)): fn()
    g.wait(lg=g.li)
    stamp('pro2')
    mi = 0
    maxload = 0
    for st, (i, m, g0) in enumerate(steps):
        n = PH_N[i]
        ncb = 4 if i < 8 else 2
        for j in range(8):
            for cc in range(ncb):
                cb = cc if j % 2 == 0 else ncb - 1 - cc
                k = af_slot[(i, j + m)]
                xb = AF0 + 4 * k
                g.need(R('v', xb, 4), ('F', i, j + m))
                if i < 8:
                    wb = WF0 + 16 * (st & 1) + 4 * cb
                    g.need(R('v', wb, 4), ('W', st, cb)); wtxt = vr(wb, 4)
                    d = (j * 4 + cb) * 4; first = (st == 0)
                else:
                    ts = st - NUV
                    wb = 192 + 8 * (ts % NR) + 4 * cb
                    g.need(R('a', wb, 4), ('Hs', ts, cb)); wtxt = ar(wb, 4)
                    d = 128 + (j * 2 + cb) * 4; first = (ts == 0)
                e(f"v_mfma_f32_16x16x32_bf16 {ar(d,4)}, {wtxt}, {vr(xb,4)}, {'0' if first else ar(d,4)}")
                g.cur = mi
                if cc == ncb - 1 and (j == 0 or m == n - 1):
                    free_af.append(k)
                maxload = max(maxload, len(gaps[mi]))
                for fn in gaps[mi]: fn()
                mi += 1
    assert mi == NM
    g.cur = NM; g.mute = 0
    stamp('end')
    e("s_nop 3")
    for fn in tail_w: fn()
    g.wait(lg=g.li)
    e("s_barrier")
    for fn in pread('Rt'): fn()
    O = OP
    for blk in range(4):
        for hp in range(2):
            a0 = RED + 4 * blk + 2 * hp
            g.valu(f"v_pk_add_f32 {vr(a0,2)}, {vr(a0,2)}, {vr(a0+16,2)}", reads=[(R('v', a0, 2), ('Rt', blk, 0)), (R('v', a0 + 16, 2), ('Rt', blk, 1))])
            g.valu(f"v_pk_add_f32 {vr(a0+32,2)}, {vr(a0+32,2)}, {vr(a0+48,2)}", reads=[(R('v', a0 + 32, 2), ('Rt', blk, 2)), (R('v', a0 + 48, 2), ('Rt', blk, 3))])
        for hp in range(2):
            a0 = RED + 4 * blk + 2 * hp; o = O + 4 * blk + 2 * hp
            e(f"v_pk_add_f32 {vr(o,2)}, {vr(o,2)}, {vr(a0,2)}")
        for hp in range(2):
            a0 = RED + 4 * blk + 2 * hp; o = O + 4 * blk + 2 * hp
            e(f"v_pk_add_f32 {vr(o,2)}, {vr(o,2)}, {vr(a0+32,2)}")
    for jj in range(2):
        mk = sMask + 2 * (2 * jj + 1)
        e(f"s_mov_b64 exec, s[{mk}:{mk+1}]")
        for hp in range(4):
            e(f"v_pk_add_f32 {vr(SS+2*hp,2)}, {vr(SS+2*hp,2)}, {vr(O+8*jj+2*hp,2)}")
            e(f"v_pk_fma_f32 {vr(SS+8+2*hp,2)}, {vr(O+8*jj+2*hp,2)}, {vr(O+8*jj+2*hp,2)}, {vr(SS+8+2*hp,2)}")
    e("s_mov_b64 exec, -1")
    e("s_nop 1")
    for k_ in range(8): e(f"v_add_f32_dpp v{SS+k_}, v{SS+k_}, v{SS+k_} row_ror:8 row_mask:0xf bank_mask:0x3")
    for k_ in range(8): e(f"v_add_f32_dpp v{SS+k_}, v{SS+8+k_}, v{SS+8+k_} row_ror:8 row_mask:0xf bank_mask:0xc")
    for k_ in range(4): e(f"v_add_f32_dpp v{SS+k_}, v{SS+k_}, v{SS+k_} row_half_mirror row_mask:0xf bank_mask:0x5")
    for k_ in range(4): e(f"v_add_f32_dpp v{SS+k_}, v{SS+4+k_}, v{SS+4+k_} row_half_mirror row_mask:0xf bank_mask:0xa")
    for k_ in range(4): e(f"v_add_f32_dpp v{SS+k_}, v{SS+k_}, v{SS+k_} quad_perm:[1,0,3,2] row_mask:0xf bank_mask:0xf")
    for k_ in range(4): e(f"v_add_f32_dpp v{SS+k_}, v{SS+k_}, v{SS+k_} quad_perm:[2,3,0,1] row_mask:0xf bank_mask:0xf")
    e("s_mov_b32 exec_lo, 0x11111111"); e("s_mov_b32 exec_hi, 0x11111111")
    g.lg(f"ds_write_b128 v{vSW}, {vr(SS,4)}")
    e("s_mov_b64 exec, -1")
    g.wait(lg=g.li)
    e("s_barrier")
    Q = RED
    for w2 in range(4):
        g.lg(f"ds_read2_b32 {vr(Q+2*w2,2)}, v{vSR} offset0:{w2*64} offset1:{w2*64+8}")
    g.wait(lg=g.li)
    e(f"v_pk_add_f32 {vr(Q,2)}, {vr(Q,2)}, {vr(Q+2,2)}")
    e(f"v_pk_add_f32 {vr(Q+4,2)}, {vr(Q+4,2)}, {vr(Q+6,2)}")
    e(f"v_pk_add_f32 {vr(Q,2)}, {vr(Q,2)}, {vr(Q+4,2)}")
    e(f"v_mul_f32 v{Q+2}, s{sInvN}, v{Q}")
    e(f"v_fma_f32 v{Q+5}, -v{Q}, v{Q+2}, v{Q+1}")
    e(f"v_add_f32 v{Q+4}, v{vKc}, v{Q+2}")
    e(f"v_max_f32 v{Q+5}, 0, v{Q+5}")
    g.vm(f"buffer_store_dwordx2 {vr(Q+4,2)}, v{vStSt}, s[{SWS}:{SWS+3}], 0 offen sc1")
    stamp('pub')
    Pp = RED + 8
    e(f"s_mov_b32 s{sP0}, 0x8000")
    g.out.append("L_poll3:")
    for u in range(4):
        e(f"buffer_load_dwordx2 {vr(Pp+2*u,2)}, v{vStP}, s[{SWS}:{SWS+3}], 0 offen offset:{u*256} sc1")
    e("s_waitcnt vmcnt(0)")
    e(f"v_max3_u32 v{Q}, v{Pp+1}, v{Pp+3}, v{Pp+5}")
    e(f"v_max_u32 v{Q}, v{Q}, v{Pp+7}")
    e(f"v_cmp_eq_u32 vcc, -1, v{Q}")
    e(f"s_sub_u32 s{sP0}, s{sP0}, 1")
    e("s_nop 3")
    e("s_cbranch_vccz L_got3")
    e(f"s_cmp_lg_u32 s{sP0}, 0")
    e("s_cbranch_scc1 L_poll3")
    g.out.append("L_got3:")
    stamp('got')
    e(f"v_add_f32 v{Q}, v{Pp}, v{Pp+2}")
    e(f"v_add_f32 v{Q}, v{Q}, v{Pp+4}")
    e(f"v_mul_f32 v{Q}, s{sC+4}, v{Q}")
    e(f"v_fmac_f32 v{Q}, v{vF3}, v{Pp+6}")
    e(f"v_add_f32 v{Q+2}, v{Pp+1}, v{Pp+3}")
    e(f"v_mov_b32 v{Q+1}, v{Q}")
    e(f"v_add_f32 v{Q+3}, v{Pp+5}, v{Pp+7}")
    e(f"v_add_f32 v{Q+2}, v{Q+2}, v{Q+3}")
    e(f"v_permlane32_swap_b32 v{Q}, v{Q+1}")
    e(f"v_mul_f32 v{Q+2}, s{sC+5}, v{Q+2}")
    e(f"v_add_f32 v{Q}, v{Q}, v{Q+1}")
    for u in range(4): e(f"v_sub_f32 v{Pp+2*u}, v{Pp+2*u}, v{Q}")
    e(f"v_mul_f32 v{Q+3}, v{Pp}, v{Pp}")
    e(f"v_fmac_f32 v{Q+3}, v{Pp+2}, v{Pp+2}")
    e(f"v_fmac_f32 v{Q+3}, v{Pp+4}, v{Pp+4}")
    e(f"v_mul_f32 v{Q+4}, v{vF3}, v{Pp+6}")
    e(f"v_fma_f32 v{Q+2}, s{sC+4}, v{Q+3}, v{Q+2}")
    e(f"v_fmac_f32 v{Q+2}, v{Q+4}, v{Pp+6}")
    e(f"v_sub_f32 v{Q+4}, v{vKc}, v{Q}")
    e(f"v_mov_b32 v{Q+3}, v{Q+2}")
    e("s_nop 1")
    e(f"v_permlane32_swap_b32 v{Q+2}, v{Q+3}")
    e(f"v_add_f32 v{Q+2}, v{Q+2}, v{Q+3}")
    e(f"v_add_f32 v{Q+2}, 0x{f2u(1e-5):08x}, v{Q+2}")
    e(f"v_rsq_f32 v{Q+2}, v{Q+2}")
    e("s_nop 0")
    e(f"v_mul_f32 v{Q+2}, v{vGam}, v{Q+2}")
    e(f"v_fma_f32 v{Q+3}, v{Q+4}, v{Q+2}, v{vBet}")
    e(f"ds_write2_b32 v{vABw}, v{Q+2}, v{Q+3} offset0:0 offset1:32")
    AA = RED + 16; BB = RED + 24
    e(f"ds_read_b128 {vr(AA,4)}, v{vABr}")
    e(f"ds_read_b128 {vr(AA+4,4)}, v{vABr} offset:16")
    e(f"ds_read_b128 {vr(BB,4)}, v{vABr} offset:128")
    e(f"ds_read_b128 {vr(BB+4,4)}, v{vABr} offset:144")
    e("s_waitcnt lgkmcnt(0)")
    U = RED + 32
    for (src, row) in ((EF, 0), (OP, 1), (EF + 8, 2), (OP + 8, 3)):
        u = U + 8 * (row & 1); pk = RED + 48 + 4 * row
        for hp in range(4): e(f"v_pk_fma_f32 {vr(src+2*hp,2)}, {vr(src+2*hp,2)}, {vr(AA+2*hp,2)}, {vr(BB+2*hp,2)}")
        for hp in range(4): e(f"v_pk_mul_f32 {vr(u+2*hp,2)}, {vr(src+2*hp,2)}, {vr(src+2*hp,2)}")
        for hp in range(4): e(f"v_pk_fma_f32 {vr(u+2*hp,2)}, {vr(u+2*hp,2)}, s[{sC}:{sC+1}], v[252:253]")
        for hp in range(4): e(f"v_pk_mul_f32 {vr(u+2*hp,2)}, {vr(u+2*hp,2)}, {vr(src+2*hp,2)}")
        for d in range(8): e(f"v_exp_f32 v{u+d}, v{u+d}")
        for hp in range(4): e(f"v_pk_add_f32 {vr(u+2*hp,2)}, {vr(u+2*hp,2)}, s[{sC+2}:{sC+3}]")
        for d in range(8): e(f"v_rcp_f32 v{u+d}, v{u+d}")
        for hp in range(4): e(f"v_pk_mul_f32 {vr(u+2*hp,2)}, {vr(u+2*hp,2)}, {vr(src+2*hp,2)}")
        for hp in range(4): e(f"v_cvt_pk_bf16_f32 v{pk+hp}, v{u+2*hp}, v{u+2*hp+1}")
        e(f"buffer_store_dwordx4 {vr(pk,4)}, v{vOut}, s[{SOUT}:{SOUT+3}], s{sOutO} offen offset:{row*1024}")
    if stamps:
        e("s_waitcnt vmcnt(0)")
        e(f"s_memtime s[{sXp}:{sXp+1}]".replace(f"s[{sXp}:{sXp+1}]", "s[34:35]"))
        e("s_memrealtime s[36:37]")
        e("s_waitcnt lgkmcnt(0)")
        nrec = 4 + nst[0]
        regs = [sStamp, sStamp + 2, 34, 36] + STR[:nst[0]]
        e(f"s_mul_i32 s3, s2, {8*nrec}"); e(f"s_add_u32 s3, s3, {WS_STAMP}")
        for k, r in enumerate(regs):
            e(f"v_mov_b32 v152, s{r}"); e(f"v_mov_b32 v153, s{r+1}")
            e(f"buffer_store_dwordx2 v[152:153], v{vAtom}, s[{SWS}:{SWS+3}], s3 offen offset:{8*k}")
            e("s_nop 1")
    e("s_branch L_end")
    for (name, ld, ev1, ev2, br_ok) in slow:
        g.out.append(f"L_slow_{name}:")
        e(f"s_mov_b32 s{sP1}, 0x8000")
        g.out.append(f"L_spin_{name}:")
        e(ld); e("s_waitcnt vmcnt(0)")
        for t in ev1: e(t)
        e("s_nop 3")
        for t in ev2: e(t)
        e(f"{br_ok} L_back_{name}")
        e("s_sleep 4")
        e(f"s_sub_u32 s{sP1}, s{sP1}, 1"); e(f"s_cmp_lg_u32 s{sP1}, 0"); e(f"s_cbranch_scc1 L_spin_{name}")
        e(f"s_branch L_back_{name}")
    g.out.append("L_end:")
    hdr = open("standalone__self_sup_conv_stem_hubert__speech.s.ref").read().split("\n")
    com = [l for l in hdr if l.startswith(";") and "@launch" not in l]
    txt = "\n".join(com) + f"\n; @launch grid=(256,1,1) block=(256,1,1) lds={LDS_TOTAL}\n"
    txt += f""".amdgcn_target "amdgcn-amd-amdhsa--gfx950"
.text
.globl {KN}
.p2align 8
.type {KN},@function
{KN}:
""" + "\n".join(g.out) + f"""
s_endpgm
.section .rodata,"a"
.p2align 6
.amdhsa_kernel {KN}
  .amdhsa_next_free_vgpr 512
  .amdhsa_next_free_sgpr 102
  .amdhsa_accum_offset 256
  .amdhsa_group_segment_fixed_size 0
  .amdhsa_kernarg_size 64
  .amdhsa_user_sgpr_count 2
  .amdhsa_user_sgpr_kernarg_segment_ptr 1
  .amdhsa_system_sgpr_workgroup_id_x 1
.end_amdhsa_kernel
"""
    info = dict(pre=info_pre, maxload=maxload, nwait=g.nwait, mind=g.mind, nst=nst[0], lines=len(g.out))
    return txt, info


import struct
def f2u(f): return struct.unpack("<I", struct.pack("<f", f))[0]


if __name__ == "__main__":
    import json
    name = sys.argv[1]
    opt = json.loads(sys.argv[2]) if len(sys.argv) > 2 else {}
    txt, info = generate(opt)
    open(name, "w").write(txt)
    print(name, info)
```

```python
import sys, math
from collections import defaultdict

KN = "standalone__self_sup_conv_stem_hubert__speech_kernel"

ABUF = 35360; ABLK = 2080
BBASE = 70720; BRING = 21760; BSLOT = 4352; BD = 1088; NSLOT = 5
LDS_DUMMY = 157760
ST_OFF = 158784
AB_OFF = 159808
LDS_TOTAL = 160832
WS_HS = 0; WS_XS = 8 << 20; WS_RX = 16 << 20; WS_FL = 24 << 20; WS_ST = (24 << 20) + 65536
WS_STAMP = 32 << 20
WS_BYTES = 64 << 20
OOB = 0x40000000

SX, SWT, SWS, SOUT, SDBG = 4, 8, 12, 16, 20
sB, sG, sRole, sT, sW = 24, 25, 26, 27, 28
sMA, sMA9 = 29, 30
sMB = 32
sXp = 33
sWp = 41
sXsT = 49
sTB, sTA, sHsO = 50, 51, 52
sH = 53
sHst = 57
sXsS, sXsD, sTX = 61, 62, 63
sMask = 64
sOutO, sInvN, sP0, sP1 = 72, 73, 74, 75
sPtrB, sPtrG, sPtrBe = 76, 78, 80
sC = 82
sStamp = 88

vA, vA9, vAT, vAT9 = 1, 2, 3, 4
vBd = 5
vAf, vBe, vBo, vBh, vHs, vHsSt = 9, 10, 11, 12, 13, 14
vXsA, vXsA5, vXsD, vXsD5 = 15, 16, 17, 18
vAtom, vOne, vRed, vRed2, vPW, vRxSt = 19, 20, 21, 22, 23, 24
vLE, vLO0, vLO1, vGE, vGO0, vGO1, vLK, vGK, vLKc, vGKc = 25, 26, 27, 28, 29, 30, 31, 32, 33, 34
vStSt, vStP, vFlSt, vFlP, vSW, vSR, vABw, vABr, vOut, vF3 = 35, 36, 37, 38, 39, 40, 41, 42, 43, 44
vGam, vBet, vBia = 45, 46, 47
AF0, NAF = 48, 18
WF0 = 120
TMP = 152
vKc, vKc2, vPoll = 248, 249, 250
vPl = vOne; vNon, vNsrc, vNst, vSig = 240, 242, 244, 245
sNon = 26

PH_N = [8, 8, 8, 8, 8, 8, 7, 7] + [8] * 8
vTw, vTx, vTp = 232, 233, 234
vTt, vTi, vTd = 254, 0, 255
sXsS1 = 24


def vr(b, n): return f"v[{b}:{b+n-1}]" if n > 1 else f"v{b}"
def ar(b, n): return f"a[{b}:{b+n-1}]" if n > 1 else f"a{b}"
def R(bank, b, n): return [(bank, b + i) for i in range(n)]


class Gen:
    def __init__(s):
        s.out = []
        s.vi = s.vd = s.li = s.ld = 0
        s.pend = {}
        s.tag = {}
        s.ev = {}
        s.nwait = 0
        s.cur = -1
        s.issue_gap = {}
        s.mind = {}
        s.mute = 0; s.mute_until = 0

    abl = ()
    def e(s, t):
        if s.cur > 300 and s.abl:
            if 'nob' in s.abl and t.startswith('buffer_load_dwordx4 v') and 's[8:11]' in t and ' lds' in t: return
            if 'noa' in s.abl and t.startswith('buffer_load_dwordx4 v') and 's[8:11]' not in t and ' lds' in t: return
            if 'notr' in s.abl and t.startswith('ds_read_b64_tr'): return
            if 'noaf' in s.abl and t.startswith('ds_read_b128') and ', v9 ' in t: return
            if 'nohs' in s.abl and t.startswith('buffer_load_dwordx4 a') and s.cur > 2200: return
            if 'notch' in s.abl and t.startswith('buffer_load_dword v255'): return
        s.out.append("  " + t)

    def wait(s, vm=None, lg=None):
        p = []
        if vm is not None and vm > s.vd:
            n = s.vi - vm
            if n > 63: n = 63
            p.append(f"vmcnt({n})"); s.vd = max(s.vd, s.vi - n)
        if lg is not None and lg > s.ld:
            n = s.li - lg
            if n > 15: n = 15
            p.append(f"lgkmcnt({n})"); s.ld = max(s.ld, s.li - n)
        if p:
            s.e("s_waitcnt " + " ".join(p)); s.nwait += 1

    def need(s, regs, tag=None, what=""):
        vm = lg = None
        for r in regs:
            if tag is not None:
                assert s.tag.get(r) == tag, f"content mismatch {r}: have {s.tag.get(r)} want {tag} ({what}) at gap {s.cur}"
            pd = s.pend.get(r)
            if pd:
                k, i = pd
                if k == 'vm': vm = max(vm or 0, i)
                else: lg = max(lg or 0, i)
                d = s.cur - s.issue_gap[(k, i)]
                key = tag[0] if isinstance(tag, tuple) else tag
                if (k == 'vm' and i > s.vd) or (k == 'lg' and i > s.ld):
                    s.mind[key] = min(s.mind.get(key, 10**9), d)
                del s.pend[r]
        s.wait(vm, lg)

    def vm(s, t, dst=None, tag=None, ev=None, reads=None, rtag=None):
        if reads: s.need(reads, rtag, t)
        s.e(t); s.vi += 1; s.issue_gap[('vm', s.vi)] = s.cur
        if dst:
            for r in dst:
                s.pend[r] = ('vm', s.vi); s.tag[r] = tag
        if ev: s.ev[ev] = s.vi
        return s.vi

    def lg(s, t, dst=None, tag=None, ev=None, reads=None, rtag=None):
        if reads: s.need(reads, rtag, t)
        s.e(t); s.li += 1; s.issue_gap[('lg', s.li)] = s.cur
        if dst:
            for r in dst:
                s.pend[r] = ('lg', s.li); s.tag[r] = tag
        if ev: s.ev[ev] = s.li
        return s.li

    def valu(s, t, reads=(), writes=(), wtag=None):
        for regs, tag in reads: s.need(regs, tag, t)
        if not (s.mute and (s.mute == 2 or s.cur < s.mute_until)): s.e(t)
        for r in writes:
            assert r not in s.pend, f"VALU write over pending load {r} {t}"
            s.tag[r] = wtag


def generate(opt):
    g = Gen()
    e = g.e
    g.abl = opt.get('abl', ())
    stamps = opt.get("stamps", False)
    SP_UV = opt.get("sp_uv", 5); SP_T = opt.get("sp_t", 4)
    CAP = opt.get("cap", 2)
    TSC = opt.get("tsc", "sc1"); STSC = opt.get("stsc", "sc1"); RXSC = opt.get("rxsc", "sc1")
    P0 = []; SL = []; x = 0
    for i, n in enumerate(PH_N):
        P0.append(x); sl = 32 if i < 8 else 16; SL.append(sl); x += n * sl
    NM = x
    steps = []
    for i, n in enumerate(PH_N):
        for m in range(n): steps.append((i, m, P0[i] + m * SL[i]))
    NUV = sum(PH_N[:8])
    bar = [P0[i] + (PH_N[i] - 2) * SL[i] for i in range(16)]
    gaps = defaultdict(list)
    info_pre = []

    def at(gp, fn): gaps[gp].append(fn)

    def spread(ops, start, stride=1, cap=CAP, limit=None):
        cur = start; last = start
        for fn in ops:
            while len(gaps[cur]) >= cap: cur += 1
            gaps[cur].append(fn); last = cur
            cur += stride if stride > 0 else 0
        if limit is not None: assert last < limit, f"spread overflow {last} >= {limit}"
        return last

    nst = [0]
    STR = [92, 94, 96, 98, 100, 76, 78, 80, 0]
    sset = opt.get("sset", ['pro1', 'pro2', 'end', 'pub', 'got'])
    def stamp(name):
        if not stamps or name not in sset: return
        k = nst[0]; nst[0] += 1
        e(f"{'s_memrealtime' if opt.get('rt') else 's_memtime'} s[{STR[k]}:{STR[k]+1}]")

    IPF = opt.get("ipf", 0)
    if IPF & 1:
        e("s_getpc_b64 s[84:85]")
        e("v_lshlrev_b32 v1, 6, v0")
        e(f"v_min_u32 v1, {opt.get('ipf_n', 2560)}, v1")
        g.vm(f"global_load_dword v{vTd}, v1, s[84:85]")
    elif IPF & 2:
        e("s_getpc_b64 s[84:85]")
    e("s_cmp_ge_u32 s2, 256")
    e("s_cbranch_scc1 L_end")
    e("s_load_dwordx4 s[36:39], s[0:1], 0")
    e(f"s_load_dwordx4 s[{sPtrB}:{sPtrB+3}], s[0:1], 16")
    e(f"s_load_dwordx2 s[{sPtrBe}:{sPtrBe+1}], s[0:1], 32")
    e("s_load_dwordx2 s[40:41], s[0:1], 40")
    e("s_load_dwordx4 s[44:47], s[0:1], 48")
    e("s_memrealtime s[86:87]")
    if stamps:
        e(f"s_memtime s[{sStamp}:{sStamp+1}]"); e(f"s_memrealtime s[{sStamp+2}:{sStamp+3}]")
    T0, T1, T2, T3, T4, T5 = 152, 153, 154, 155, 156, 157
    LN, RR, QQ = 158, 159, 160
    e(f"v_lshrrev_b32 v{T0}, 6, v0")
    e(f"v_and_b32 v{LN}, 63, v0")
    e(f"v_readfirstlane_b32 s{sW}, v{T0}")
    e("s_and_b32 s3, s2, 7")
    e(f"s_and_b32 s{sB}, s3, 1")
    e(f"s_and_b32 s{sG}, s3, 6")
    e("s_bfe_u32 s3, s2, 0x10003")
    e(f"s_add_u32 s{sG}, s{sG}, s3")
    e(f"s_bfe_u32 s{sRole}, s2, 0x10004")
    e(f"s_lshr_b32 s{sT}, s2, 5")
    e(f"v_and_b32 v{RR}, 15, v0")
    e(f"v_lshrrev_b32 v{QQ}, 4, v{LN}")
    e(f"s_lshl_b32 s3, s{sW}, 14")
    e(f"v_lshlrev_b32 v{T0}, 12, v{QQ}")
    e(f"v_lshl_add_u32 v{T0}, v{RR}, 4, v{T0}")
    e(f"v_add_u32 v{vA}, s3, v{T0}")
    e(f"s_lshr_b32 s3, s{sW}, 1")
    e(f"s_lshl_b32 s{sP0}, s3, 30")
    e(f"v_add_u32 v{vA9}, s{sP0}, v{vA}")
    e(f"s_mul_i32 s{sMA}, s3, {ABLK}")
    e(f"s_and_b32 s{sP1}, s{sW}, 1")
    e(f"s_lshl_b32 s{sP1}, s{sP1}, 10")
    e(f"s_add_u32 s{sMA}, s{sMA}, s{sP1}")
    e(f"s_add_u32 s{sMA9}, s{sMA}, {8*4160}")
    e(f"s_add_u32 s{sMA9+1}, s{sMA}, {8*4160+ABUF}")
    e("s_cmp_lg_u32 s3, 0")
    e(f"s_cselect_b32 s{sMA9}, {LDS_DUMMY}, s{sMA9}")
    e(f"s_cselect_b32 s{sMA9+1}, {LDS_DUMMY}, s{sMA9+1}")
    e(f"s_mul_i32 s{sMB}, s{sW}, {BRING}")
    e(f"s_add_u32 s{sMB}, s{sMB}, {BBASE}")
    e(f"v_lshrrev_b32 v{T0}, 3, v{LN}")
    e(f"v_and_b32 v{T1}, 7, v0")
    e(f"v_and_b32 v{T2}, 1, v{QQ}")
    e(f"v_lshlrev_b32 v{T2}, 1, v{T2}")
    e(f"v_xor_b32 v{T1}, v{T1}, v{T2}")
    e(f"s_lshl_b32 s3, s{sRole}, 2")
    e(f"v_xor_b32 v{T1}, s3, v{T1}")
    e(f"v_lshlrev_b32 v{T1}, 4, v{T1}")
    e(f"v_lshl_add_u32 v{T1}, v{T0}, 10, v{T1}")
    e(f"s_lshl_b32 s3, s{sW}, 15")
    e(f"s_lshl_b32 s{sP1}, s{sG}, 7")
    e(f"s_add_u32 s3, s3, s{sP1}")
    e(f"v_add_u32 v{vBd}, s3, v{T1}")
    for d in range(1, 4): e(f"v_add_u32 v{vBd+d}, {8192*d}, v{vBd}")
    e("s_waitcnt lgkmcnt(0)")
    for (srd, p, n) in ((SX, 36, 8192000), (SWT, 38, 16252928), (SWS, 46, WS_BYTES), (SOUT, 40, 0), (SDBG, 44, 256)):
        e(f"s_mov_b32 s{srd}, s{p}"); e(f"s_and_b32 s{srd+1}, s{p+1}, 0xffff")
        if n: e(f"s_mov_b32 s{srd+2}, {n}")
        e(f"s_mov_b32 s{srd+3}, 0x20000")
    e(f"s_mul_i32 s3, s{sB}, 4096000")
    e(f"s_mul_i32 s{sP1}, s{sT}, {127*4096}")
    e(f"s_add_u32 s{sTX}, s3, s{sP1}")
    e(f"s_mul_i32 s3, s{sRole}, {512+2048}")
    e(f"s_add_u32 s{sXp}, s{sTX}, s3")
    e(f"s_mul_i32 s{sWp}, s{sRole}, {262144+1048576}")
    def later_bases():
        e(f"s_lshl_b32 s3, s{sRole}, 10"); e(f"s_sub_u32 s3, 512, s3")
        e(f"s_add_u32 s{sXp+2}, s{sXp}, s3")
        e(f"s_lshl_b32 s{sP1}, s3, 9"); e(f"s_add_u32 s{sWp+2}, s{sWp}, s{sP1}")
        e(f"s_lshl_b32 s{sTA}, s{sRole}, 9"); e(f"s_add_u32 s{sTA}, s{sTA}, 1024")
        e(f"s_add_u32 s{sXp+4}, s{sTX}, s{sTA}"); e(f"s_lshl_b32 s{sWp+4}, s{sTA}, 9")
        e(f"s_add_u32 s{sXp+6}, s{sXp+4}, s3"); e(f"s_add_u32 s{sXp+6}, s{sXp+6}, 2048")
        e(f"s_add_u32 s{sWp+6}, s{sWp+4}, s{sP1}"); e(f"s_add_u32 s{sWp+6}, s{sWp+6}, 1048576")
        for i in (1, 3, 5, 7):
            e(f"s_add_u32 s{sXp+i}, s{sXp+i-1}, 256"); e(f"s_add_u32 s{sWp+i}, s{sWp+i-1}, 131072")
    def touch_setup():
        e(f"s_and_b32 s3, s{sG}, 6"); e("s_lshl_b32 s3, s3, 7")
        e(f"s_lshl_b32 s{sTB}, s{sT}, 21"); e(f"s_add_u32 s3, s3, s{sTB}")
        e(f"s_and_b32 s{sP1}, s{sG}, 1"); e(f"s_lshl_b32 s{sP1}, s{sP1}, 16"); e(f"s_add_u32 s3, s3, s{sP1}")
        e(f"s_lshl_b32 s{sP1}, s{sW}, 14"); e(f"s_add_u32 s3, s3, s{sP1}")
        e(f"v_lshrrev_b32 v{T0}, 2, v{LN}")
        e(f"v_and_b32 v{T1}, 3, v0"); e(f"v_lshlrev_b32 v{T1}, 6, v{T1}")
        e(f"v_lshl_add_u32 v{T1}, v{T0}, 10, v{T1}")
        e(f"v_add_u32 v{vTp}, s3, v{T1}")
        e("s_and_b32 s3, s2, 15"); e("s_lshl_b32 s3, s3, 13"); e(f"s_add_u32 s3, s3, s{sTB}")
        e(f"s_lshl_b32 s{sTB}, s{sW}, 11"); e(f"s_add_u32 s3, s3, s{sTB}")
        e(f"v_lshlrev_b32 v{T0}, 7, v{T0}"); e(f"v_add_u32 v{vTw}, s3, v{T0}")
        e(f"s_lshl_b32 s3, s{sG}, 16"); e(f"s_add_u32 s3, s3, s{sP1}")
        e(f"v_bfe_u32 v{T1}, v0, 3, 1"); e(f"v_lshlrev_b32 v{T1}, 7, v{T1}")
        e(f"v_lshl_add_u32 v{T1}, v{QQ}, 12, v{T1}")
        e(f"v_add_u32 v{vTx}, s3, v{T1}")
    def touch(kind, i):
        if kind == 'p': return lambda: g.vm(f"buffer_load_dword v{vTd}, v{vTp}, s[{SWT}:{SWT+3}], s{sWp+i} offen")
        if kind == 'w': return lambda: g.vm(f"buffer_load_dword v{vTd}, v{vTw}, s[{SWT}:{SWT+3}], s{sWp+i} offen")
        if kind == 'x': return lambda: g.vm(f"buffer_load_dword v{vTd}, v{vTx}, s[{SX}:{SX+3}], s{sXp+i} offen")

    def a_dma_ops(i, n):
        buf = i & 1
        pre = []
        if n < 8: pre.append(lambda: e(f"s_add_u32 m0, s{sMA}, {buf*ABUF + n*4160}"))
        else: pre.append(lambda: e(f"s_mov_b32 m0, s{sMA9+buf}"))
        if i < 8:
            pre.append(lambda: e(f"s_add_u32 s{sTA}, s{sXp+i}, {n*65536}"))
            v = vA if n < 8 else vA9
            op = lambda: g.vm(f"buffer_load_dwordx4 v{v}, s[{SX}:{SX+3}], s{sTA} offen {opt.get('asc', '')} lds", ev=('A', i, n))
        else:
            pre.append(lambda: e(f"s_add_u32 s{sTA}, s{sXsT}, {(i-8)*34816 + n*4096}"))
            v = vAT if n < 8 else vAT9
            op = lambda: g.vm(f"buffer_load_dwordx4 v{v}, s[{SWS}:{SWS+3}], s{sTA} offen {TSC} lds", ev=('A', i, n))
        return pre, op

    HPOS = opt.get("hpos", [19, 21, 49, 51])
    items = []
    for s_ in range(NUV):
        items.append(('B', s_))
        for h, ps in enumerate(HPOS):
            if ps == s_ - 1: items.append(('H', h))
    slot_of = {it: n % NSLOT for n, it in enumerate(items)}

    def b_dma_ops(it, d):
        sl = slot_of[it]
        pre = [lambda: e(f"s_add_u32 m0, s{sMB}, {sl*BSLOT + d*BD}")]
        if it[0] == 'B':
            i, m, _ = steps[it[1]]
            if d == 0: pre.append(lambda: e(f"s_add_u32 s{sTB}, s{sWp+i}, {m*2097152}"))
            so = sTB
        else:
            so = sH + it[1]
        op = lambda: g.vm(f"buffer_load_dwordx4 v{vBd+d}, s[{SWT}:{SWT+3}], s{so} offen {opt.get('bsc', '')} lds", ev=(it, d))
        return pre, op

    def emit_dma(pre, op):
        for p in pre: p()
        if len(pre) < 2: e("s_nop 0")
        op()

    PRO = opt.get("pro", ['A0', 'B0', 'S', 'p0', 'w1', 'x1', 'x2', 'B1'])
    pro_b = 0; pro_a1 = False
    for tok in PRO:
        if tok == 'S': later_bases(); touch_setup()
        elif tok == 'I':
            e("s_lshr_b32 s3, s2, 3"); e("s_lshl_b32 s3, s3, 11"); e(f"s_lshl_b32 s{sP1}, s{sW}, 9"); e(f"s_add_u32 s3, s3, s{sP1}")
            e(f"v_and_b32 v{T0}, 3, v0"); e(f"v_lshlrev_b32 v{T0}, 7, v{T0}"); e(f"v_add_u32 v{T0}, s3, v{T0}")
            e(f"v_min_u32 v{T0}, {opt.get('ipf_tot', 49152)}, v{T0}")
            g.vm(f"global_load_dword v{vTd}, v{T0}, s[84:85]")
        elif tok[0] == 'A':
            for n in range(9): emit_dma(*a_dma_ops(int(tok[1]), n))
            if tok == 'A1': pro_a1 = True
        elif tok[0] == 'B':
            assert int(tok[1]) == pro_b; pro_b += 1
            for d in range(4): emit_dma(*b_dma_ops(items[int(tok[1])], d))
        else: touch(tok[0], int(tok[1:]))()

    e(f"s_or_b32 s86, s86, 1")
    e(f"v_mov_b32 v{vNsrc}, s86"); e(f"v_mov_b32 v{vNsrc+1}, s87")
    NT, MT, PART = 89 if False else sHst, sHst + 1, sHst + 2
    e(f"s_lshl_b32 s{NT}, s{sG}, 1"); e(f"s_add_u32 s{NT}, s{NT}, s{sRole}")
    e(f"s_lshl_b32 s{MT}, s{sB}, 3"); e(f"s_add_u32 s{MT}, s{MT}, s{sT}")
    e(f"s_xor_b32 s{PART}, s2, 16")
    e(f"s_lshl_b32 s3, s{sW}, 10")
    e(f"v_lshlrev_b32 v{T5}, 4, v{LN}")
    e(f"v_add_u32 v{vAT}, s3, v{T5}")
    e(f"v_add_u32 v{vAT9}, s{sP0}, v{vAT}")
    e(f"s_mul_i32 s{sXsT}, s{MT}, 278528"); e(f"s_add_u32 s{sXsT}, s{sXsT}, {WS_XS}")
    e(f"v_mul_u32_u24 v{T0}, {ABLK}, v{RR}")
    e(f"v_lshl_add_u32 v{T0}, v{QQ}, 4, v{T0}")
    e(f"s_lshl_b32 s3, s{sW}, 6")
    e(f"v_add_u32 v{vAf}, s3, v{T0}")
    e(f"v_mul_u32_u24 v{T0}, {BD}, v{QQ}")
    e(f"v_bfe_u32 v{T1}, v0, 2, 2")
    e(f"v_lshl_add_u32 v{T0}, v{T1}, 7, v{T0}")
    e(f"v_add_u32 v{T0}, s{sMB}, v{T0}")
    e(f"v_and_b32 v{T1}, 3, v0")
    e(f"v_bfe_u32 v{T2}, v0, 3, 1")
    e(f"v_lshl_add_u32 v{T3}, v{T1}, 3, v{T0}")
    e(f"v_lshlrev_b32 v{T4}, 5, v{T2}")
    e(f"v_add_u32 v{vBe}, v{T3}, v{T4}")
    e(f"v_sub_u32 v{vBo}, v{T3}, v{T4}")
    e(f"v_lshlrev_b32 v{T2}, 1, v{T2}")
    e(f"v_xor_b32 v{T1}, v{T1}, v{T2}")
    e(f"v_lshl_add_u32 v{vBh}, v{T1}, 4, v{T0}")
    e(f"s_lshl_b32 s3, s{sW}, 11")
    e(f"v_add_u32 v{T0}, s3, v{T5}")
    e(f"s_lshl_b32 s3, s{NT}, 19")
    e(f"v_add_u32 v{vHs}, s3, v{T0}")
    e(f"s_lshl_b32 s{sP0}, s{sRole}, 1"); e(f"s_add_u32 s{sP0}, s{sP0}, s{sB}")
    e(f"s_lshl_b32 s3, s{sP0}, 16")
    e(f"s_lshl_b32 s{sP1}, s{sT}, 13"); e(f"s_add_u32 s3, s3, s{sP1}")
    e(f"s_lshl_b32 s{sP1}, s{sG}, 20"); e(f"s_add_u32 s3, s3, s{sP1}")
    e(f"v_add_u32 v{vHsSt}, s3, v{T0}")
    e(f"s_mov_b32 s{sHsO}, 0")
    e(f"s_lshl_b32 s{sP0}, s{sP0}, 17")
    e(f"s_lshl_b32 s3, s{sT}, 21"); e(f"s_add_u32 s{sH}, s3, s{sP0}")
    e(f"s_add_u32 s{sH+1}, s{sH}, {2<<19}")
    e(f"s_lshl_b32 s3, s{sRole}, 20")
    e(f"s_add_u32 s{sH+3}, s{sH}, {3<<19}"); e(f"s_sub_u32 s{sH+3}, s{sH+3}, s3")
    e(f"s_sub_u32 s{sH+2}, s{sH+3}, {2<<19}")
    e(f"s_cmp_lt_i32 s{sH+2}, 0")
    e(f"s_cselect_b32 s{sH+2}, {OOB}, s{sH+2}")
    e(f"s_lshl_b32 s3, s{NT}, 19"); e(f"s_lshl_b32 s{sP1}, s{sT}, 13"); e(f"s_add_u32 s3, s3, s{sP1}")
    e(f"s_lshl_b32 s{sP1}, s{sW}, 11"); e(f"s_add_u32 s3, s3, s{sP1}")
    e(f"s_and_b32 s{sP1}, s{NT}, 3"); e(f"s_lshl_b32 s{sP1}, s{sP1}, 2"); e(f"s_add_u32 s{sP1}, s{sP1}, s{sW}")
    e(f"s_mul_i32 s{sP1}, s{sP1}, 2176"); e(f"s_add_u32 s{sP1}, s{sP1}, s{sXsT}"); e(f"s_sub_u32 s{sP1}, s{sP1}, 2048")
    e(f"v_cmp_gt_u32 vcc, 33, v{LN}")
    e(f"v_mov_b32 v{T1}, s3"); e(f"v_mov_b32 v{T2}, s{sP1}"); e(f"v_mov_b32 v{T3}, {OOB}")
    e(f"v_cndmask_b32 v{T2}, v{T3}, v{T2}, vcc")
    e(f"v_cmp_gt_u32 vcc, 16, v{LN}")
    e(f"v_mov_b32 v{T4}, 34816")
    e(f"v_mov_b32 v{T3}, 65536")
    e(f"v_cndmask_b32 v{T2}, v{T2}, v{T1}, vcc")
    e(f"v_cndmask_b32 v235, v{T4}, v{T3}, vcc")
    e(f"v_lshl_add_u32 v{vTt}, v{LN}, 7, v{T2}")
    e(f"v_lshrrev_b32 v{T0}, 3, v{LN}")
    e(f"s_lshl_b32 s3, s{sW}, 3")
    e(f"v_add_u32 v{T0}, s3, v{T0}")
    e(f"v_and_b32 v{T1}, 7, v0")
    e(f"v_lshlrev_b32 v{T1}, 4, v{T1}")
    e(f"v_lshl_add_u32 v{vXsA}, v{T0}, 12, v{T1}")
    e(f"v_lshl_add_u32 v{vXsD}, v{T0}, 8, v{T1}")
    e(f"s_lshl_b32 s3, s{sW}, 1"); e(f"s_add_u32 s3, s3, s{sRole}")
    e(f"s_cmp_lg_u32 s3, 1"); e(f"s_cselect_b32 s3, {OOB}, 0")
    e(f"v_add_u32 v{vXsA5}, s3, v{vXsA}"); e(f"v_add_u32 v{vXsD5}, s3, v{vXsD}")
    e(f"s_lshl_b32 s3, s{sG}, 7"); e(f"s_add_u32 s{sXsS}, s{sTX}, s3")
    e(f"s_lshl_b32 s3, s{sRole}, 18"); e(f"s_add_u32 s{sXsS}, s{sXsS}, s3"); e(f"s_add_u32 s{sXsS}, s{sXsS}, 2048")
    e(f"s_lshr_b32 s3, s{sG}, 1"); e(f"s_mul_i32 s3, s3, 34816"); e(f"s_add_u32 s{sXsD}, s{sXsT}, s3")
    e(f"s_and_b32 s3, s{sG}, 1"); e("s_lshl_b32 s3, s3, 7"); e(f"s_add_u32 s{sXsD}, s{sXsD}, s3")
    e(f"s_lshl_b32 s3, s{sRole}, 14"); e(f"s_add_u32 s{sXsD}, s{sXsD}, s3")
    e(f"v_add_u32 v{vPW}, s{sMB}, v{T5}")
    e(f"s_lshl_b32 s3, s{sW}, 12"); e(f"s_add_u32 s{sP1}, s3, {BBASE}")
    e(f"v_add_u32 v{vRed}, s{sP1}, v{T5}")
    e(f"v_add_u32 v{vRed2}, {2*BRING}, v{vRed}")
    e(f"s_lshl_b32 s{sP1}, s2, 14"); e(f"s_add_u32 s{sP1}, s{sP1}, s3"); e(f"s_add_u32 s{sP1}, s{sP1}, {WS_RX}")
    e(f"v_add_u32 v{vRxSt}, s{sP1}, v{T5}")
    e(f"v_lshlrev_b32 v{T0}, 9, v{QQ}")
    e(f"v_lshl_add_u32 v{T1}, v{RR}, 4, v{T0}")
    e(f"s_add_u32 s{sP1}, s{sMB}, 16384")
    e(f"v_add_u32 v{vLE}, s{sP1}, v{T1}")
    e(f"v_add_u32 v{vLK}, {BBASE+16384}, v{T0}")
    e(f"s_lshl_b32 s{sP1}, s{PART}, 14"); e(f"s_add_u32 s{sP1}, s{sP1}, {WS_RX}")
    e(f"v_add_u32 v{vGK}, s{sP1}, v{T0}")
    e(f"v_and_b32 v{T2}, 31, v0")
    e(f"v_lshrrev_b32 v{T3}, 2, v{T2}"); e(f"v_lshlrev_b32 v{T3}, 8, v{T3}")
    e(f"v_and_b32 v{T4}, 3, v0"); e(f"v_lshl_add_u32 v{T3}, v{T4}, 2, v{T3}")
    e(f"v_add_u32 v{vGKc}, s{sP1}, v{T3}")
    e(f"v_add_u32 v{vLKc}, {BBASE+16384}, v{T3}")
    e(f"s_add_u32 s{sP1}, s{sP1}, s3")
    e(f"v_add_u32 v{vGE}, s{sP1}, v{T1}")
    e(f"s_cmp_lt_u32 s{sW}, 3")
    e(f"s_mov_b32 s3, {(-3*BRING+16) & 0xffffffff}"); e(f"s_mov_b32 s{sP1}, {(-12288+16) & 0xffffffff}")
    e(f"s_cselect_b32 s3, {BRING}, s3")
    e(f"s_cselect_b32 s{sP1}, 4096, s{sP1}")
    e(f"s_cmp_eq_u32 s{sRole}, 0")
    e(f"s_cselect_b32 s3, s3, 2048")
    e(f"s_cselect_b32 s{sP1}, 2048, s{sP1}")
    e(f"s_cselect_b32 s{sP0}, 2048, 0")
    e(f"v_add_u32 v{vLO1}, s3, v{vLE}"); e(f"v_add_u32 v{vGO1}, s{sP1}, v{vGE}"); e(f"v_add_u32 v{vLO0}, s{sP0}, v{vLE}")
    e(f"s_cselect_b32 s{sP0}, 0, 2048")
    e(f"v_add_u32 v{vGO0}, s{sP0}, v{vGE}")
    e(f"s_lshl_b32 s3, s{sB}, 4"); e(f"s_add_u32 s3, s3, s{NT}"); e("s_lshl_b32 s3, s3, 11"); e(f"s_add_u32 s3, s3, {WS_ST}")
    e(f"v_lshlrev_b32 v{T3}, 3, v{T2}")
    e(f"v_bfe_u32 v{T4}, v0, 5, 1")
    e(f"v_lshl_add_u32 v{T1}, v{T4}, 10, v{T3}")
    e(f"v_add_u32 v{vStP}, s3, v{T1}")
    e(f"s_lshl_b32 s{sP1}, s{sT}, 8"); e(f"s_add_u32 s3, s3, s{sP1}")
    e(f"v_add_u32 v{T3}, s3, v{T3}")
    e(f"v_mov_b32 v{T1}, {OOB}")
    e("v_cmp_gt_u32 vcc, 32, v0")
    e(f"s_lshl_b32 s3, s2, 6"); e(f"s_add_u32 s3, s3, {WS_FL+8192}")
    e(f"v_cndmask_b32 v{vStSt}, v{T1}, v{T3}, vcc")
    e(f"v_mov_b32 v{T3}, s3")
    e("v_cmp_eq_u32 vcc, 0, v0")
    e(f"s_lshl_b32 s3, s{PART}, 6"); e(f"s_add_u32 s3, s3, {WS_FL+8192}")
    e(f"v_cndmask_b32 v{vFlSt}, v{T1}, v{T3}, vcc")
    e(f"v_cndmask_b32 v{vAtom}, v{T1}, 0, vcc")
    e(f"v_mov_b32 v{vFlP}, s3")
    e(f"s_lshl_b32 s3, s{sG}, 9"); e(f"s_add_u32 s3, s3, {WS_FL}")
    e(f"s_lshl_b32 s{sP1}, s{MT}, 8"); e(f"s_add_u32 s{sP1}, s{sP1}, {WS_FL+4096}")
    e(f"v_lshlrev_b32 v{T3}, 4, v{T2}"); e(f"v_add_u32 v{T3}, s3, v{T3}")
    e(f"v_cmp_gt_u32 vcc, 32, v{LN}")
    e(f"v_lshlrev_b32 v{vPl}, 4, v{RR}"); e(f"v_add_u32 v{vPl}, s{sP1}, v{vPl}")
    e(f"v_cndmask_b32 v{vPl}, v{vPl}, v{T3}, vcc")
    e(f"s_lshl_b32 s{sP0}, s{NT}, 4"); e(f"s_add_u32 s{sP1}, s{sP1}, s{sP0}")
    e(f"s_lshl_b32 s{sP0}, s{sT}, 1"); e(f"s_add_u32 s{sP0}, s{sP0}, s{sRole}"); e(f"s_lshl_b32 s{sP0}, s{sP0}, 1")
    e(f"s_add_u32 s{sP0}, s{sP0}, s{sB}"); e(f"s_lshl_b32 s{sP0}, s{sP0}, 4"); e(f"s_add_u32 s3, s3, s{sP0}")
    e("v_cmp_eq_u32 vcc, 1, v0")
    e(f"v_add_u32 v{vSig}, s3, v{vAtom}"); e(f"v_mov_b32 v{T3}, s{sP1}")
    e(f"v_cndmask_b32 v{vSig}, v{vSig}, v{T3}, vcc")
    e("s_cmp_eq_u32 s2, 0"); e(f"s_cselect_b32 s3, 0, {OOB}")
    e(f"v_or_b32 v{vNst}, s3, v{vAtom}")
    g.vm(f"buffer_store_dwordx2 {vr(vNsrc,2)}, v{vNst}, s[{SDBG}:{SDBG+3}], 0 offen sc1")
    f254 = "0x%08x" % f2u(254.0 / 1985.0); f207 = "0x%08x" % f2u(207.0 / 1985.0)
    e(f"v_cmp_eq_u32 vcc, 1, v{T4}")
    e(f"v_mov_b32 v{T1}, {f254}"); e(f"v_mov_b32 v{T3}, {f207}")
    e(f"v_cndmask_b32 v{vF3}, v{T1}, v{T3}, vcc")
    e(f"s_lshl_b32 s3, s{sW}, 8")
    e(f"v_lshrrev_b32 v{T1}, 2, v{RR}"); e(f"v_lshlrev_b32 v{T1}, 4, v{T1}")
    e(f"v_lshl_add_u32 v{T1}, v{QQ}, 6, v{T1}")
    e(f"s_add_u32 s{sP1}, s3, {ST_OFF}")
    e(f"v_add_u32 v{vSW}, s{sP1}, v{T1}")
    e(f"v_lshrrev_b32 v{T1}, 3, v{T2}"); e(f"v_lshlrev_b32 v{T1}, 6, v{T1}")
    e(f"v_and_b32 v{T3}, 7, v0"); e(f"v_lshl_add_u32 v{T1}, v{T3}, 2, v{T1}")
    e(f"v_add_u32 v{vSR}, {ST_OFF}, v{T1}")
    e(f"s_add_u32 s{sP1}, s3, {AB_OFF}")
    e(f"v_lshlrev_b32 v{T1}, 2, v{T2}"); e(f"v_add_u32 v{vABw}, s{sP1}, v{T1}")
    e(f"v_lshlrev_b32 v{T1}, 5, v{QQ}"); e(f"v_add_u32 v{vABr}, s{sP1}, v{T1}")
    e(f"s_lshl_b32 s3, s{sW}, 2")
    e(f"v_lshlrev_b32 v{T1}, 4, v{RR}"); e(f"v_add_u32 v{T1}, s3, v{T1}")
    e(f"v_lshlrev_b32 v{T3}, 4, v{QQ}"); e(f"v_lshl_add_u32 v{vOut}, v{T1}, 10, v{T3}")
    e(f"s_cmp_eq_u32 s{sT}, 7")
    e(f"s_mov_b32 s{sP1}, 254"); e(f"s_mov_b32 s{sInvN}, 0x{f2u(1.0/254):08x}")
    e(f"s_cselect_b32 s{sP1}, 207, s{sP1}")
    e(f"s_cselect_b32 s{sInvN}, 0x{f2u(1.0/207):08x}, s{sInvN}")
    for k in range(4):
        e(f"v_add_u32 v{T3}, {k}, v{T1}")
        e(f"v_cmp_gt_u32 s[{sMask+2*k}:{sMask+2*k+1}], s{sP1}, v{T3}")
    e(f"s_mul_i32 s3, s{sB}, 1985"); e(f"s_mul_i32 s{sP0}, s{sT}, 254"); e(f"s_add_u32 s3, s3, s{sP0}")
    e(f"s_add_u32 s{sP1}, s{sP1}, s3"); e(f"s_lshl_b32 s{SOUT+2}, s{sP1}, 10")
    e(f"s_lshl_b32 s3, s3, 10"); e(f"s_lshl_b32 s{sP0}, s{NT}, 6"); e(f"s_add_u32 s{sOutO}, s3, s{sP0}")
    vGB, vM1 = 236, 238
    e(f"v_lshlrev_b32 v{T1}, 1, v{T2}"); e(f"v_add_u32 v{vGB}, s{sP0}, v{T1}")
    e(f"s_lshl_b32 s3, s{sRole}, 19")
    e(f"s_xor_b32 s{sP1}, s3, {1<<19}")
    e(f"s_mov_b32 s{sHst}, s3"); e(f"s_mov_b32 s{sHst+1}, s{sP1}")
    e(f"s_add_u32 s{sHst+2}, s3, {1<<18}"); e(f"s_add_u32 s{sHst+3}, s{sP1}, {1<<18}")
    e(f"s_lshr_b32 s3, s{sG}, 2"); e("s_lshl_b32 s3, s3, 11")
    e(f"s_add_u32 s{sXsS1}, s{sXsS}, 1024"); e(f"s_sub_u32 s{sXsS1}, s{sXsS1}, s3")
    e(f"v_mov_b32 v{vM1}, -1"); e(f"v_mov_b32 v{vM1+1}, -1")
    e(f"v_mov_b32 v{vTi}, v235")
    c0 = -2.0 * math.log2(math.e) * math.sqrt(2.0 / math.pi); c1 = c0 * 0.044715
    e(f"s_mov_b32 s{sC}, 0x{f2u(c1):08x}"); e(f"s_mov_b32 s{sC+1}, 0x{f2u(c1):08x}")
    e(f"s_mov_b32 s{sC+2}, 1.0"); e(f"s_mov_b32 s{sC+3}, 1.0")
    e(f"s_mov_b32 s{sC+4}, {f254}"); e(f"s_mov_b32 s{sC+5}, 0x{f2u(1.0/1985):08x}")

    free_af = list(range(NAF)); af_slot = {}
    def af_read(i, sp):
        def fn():
            assert free_af, "A frag pool exhausted"
            k = free_af.pop(0); af_slot[(i, sp)] = k
            b = AF0 + 4 * k
            off = (i & 1) * ABUF + (sp >> 3) * ABLK + (sp & 7) * 256
            g.lg(f"ds_read_b128 {vr(b,4)}, v{vAf} offset:{off}", dst=R('v', b, 4), tag=('F', i, sp), ev=('Fr', i, sp))
        return fn
    def tr_reads(it):
        ops = []
        sl = slot_of[it]
        for cb in range(4):
            for t in range(2):
                if it[0] == 'B':
                    b = WF0 + 16 * (it[1] & 1) + 4 * cb + 2 * t
                    v = vBe if cb % 2 == 0 else vBo
                    off = sl * BSLOT + t * 512 + cb * 32
                    tag = ('W', it[1], cb)
                else:
                    b = TMP + 16 * (it[1] & 1) + 4 * cb + 2 * t
                    v = vBh
                    off = sl * BSLOT + t * 512 + (cb >> 1) * 64 + (cb & 1) * 8
                    tag = ('Hf', it[1], cb)
                ops.append(lambda b=b, v=v, off=off, tag=tag: g.lg(f"ds_read_b64_tr_b16 {vr(b,2)}, v{v} offset:{off}", dst=R('v', b, 2), tag=tag, ev=('Tr', it)))
        return ops
    freed = {}
    for s_ in range(NUV - 1):
        g0 = steps[s_][2]
        it = ('B', s_ + 1)
        at(g0, lambda it=it: g.wait(vm=g.ev[(it, 3)]))
        for k, fn in enumerate(tr_reads(it)): at(g0 + 1 + k, fn)
        at(g0 + 13, lambda it=it: g.wait(lg=g.ev[('Tr', it)]))
        freed[it] = g0 + 13
        for h, ps in enumerate(HPOS):
            if ps == s_:
                it = ('H', h)
                at(g0 + 14, lambda it=it: g.wait(vm=g.ev[(it, 3)]))
                for k, fn in enumerate(tr_reads(it)): at(g0 + 15 + k, fn)
                at(g0 + 28, lambda it=it: g.wait(lg=g.ev[('Tr', it)]))
                freed[it] = g0 + 28
    freed[('B', 0)] = -1
    bar_extra_vm = defaultdict(list); bar_extra_lg = defaultdict(list)
    def barrier(i):
        def fn():
            vm = [g.ev[('A', i + 1, 8)]] if i < 15 else []
            vm += [g.ev[k] for k in bar_extra_vm[i]]
            lg = [g.ev[('Fr', i, PH_N[i] + 6)]] + [g.ev[k] for k in bar_extra_lg[i]]
            g.wait(vm=max(vm) if vm else None, lg=max(lg))
            e("s_barrier")
            stamp(i)
        return fn
    for i in range(15):
        gaps[bar[i]].insert(0, barrier(i))
    for i in range(16):
        n = PH_N[i]; sl = SL[i]
        k = n - 1
        span = (n - 2) * sl - 12
        for u in range(k):
            gp = P0[i] + (9 if sl == 32 else 1) + (u * span) // k
            spread([af_read(i, 8 + u)], gp, limit=bar[i] - 4)
        if i < 15:
            for u in range(8):
                gp = bar[i] + 9 * (sl == 32) + 1 + (u * (2 * sl - 18)) // 8
                spread([af_read(i + 1, u)], gp, limit=P0[i + 1] - 4)

    vq = []
    for n_, it in enumerate(items):
        if n_ < pro_b: continue
        fr = freed[items[n_ - NSLOT]] if n_ >= NSLOT else -1
        s_need = it[1] - 1 if it[0] == 'B' else HPOS[it[1]]
        dl = steps[s_need][2] + (14 if it[0] == 'H' else 0)
        for d in range(4):
            pre, op = b_dma_ops(it, d)
            vq.append((fr + 1 + len(pre), dl + d * 0.1, pre, op, 'B'))
    A_OFF = opt.get("a_off", 64); A_SP = opt.get("a_sp", 14); A1_OFF = opt.get("a1_off", 40)
    for i in range(1, 16):
        if i == 1 and pro_a1: continue
        for n in range(9):
            pre, op = a_dma_ops(i, n)
            if i == 1: ea = A1_OFF + n * A_SP
            elif i < 8: ea = bar[i - 2] + 1 + len(pre) + A_OFF + n * A_SP
            else: ea = bar[i - 2] + 1 + len(pre)
            vq.append((ea, ea + 1 if i < 8 else (bar[i - 1] - 400 + n * 0.1 if i < 9 else bar[i - 1] - 60 + n * 0.1), pre, op))
    TCH = opt.get("tch")
    if TCH is None:
        TCH = []
        for i in range(8):
            s0 = sum(PH_N[:i])
            if i + 1 < 8: TCH.append((s0 + opt.get("p_step", 1), 'p', i + 1))
            if i + 2 < 8: TCH.append((s0 + opt.get("l_step", 5), 'w', i + 2))
            if i + 3 < 8: TCH.append((s0 + opt.get("l_step", 5), 'x', i + 3))
    for (st_, kind, ph) in TCH:
        ea = steps[st_][2] + opt.get("t_q", 17)
        vq.append((ea, ea + 0.5, [], touch(kind, ph)))
    m0_ = steps[opt.get("misc", 9)][2]
    vq.append((m0_, m0_ + 60, [], lambda: g.vm(f"global_load_ushort v{vBia}, v{vGB}, s[{sPtrB}:{sPtrB+1}]", dst=R('v', vBia, 1), tag='bia')))
    vq.append((m0_, m0_ + 60, [], lambda: g.vm(f"global_load_ushort v{vGam}, v{vGB}, s[{sPtrG}:{sPtrG+1}]", dst=R('v', vGam, 1), tag='gam')))
    vq.append((m0_, m0_ + 60, [], lambda: g.vm(f"global_load_ushort v{vBet}, v{vGB}, s[{sPtrBe}:{sPtrBe+1}]", dst=R('v', vBet, 1), tag='bet')))
    vq.append((m0_, m0_ + 60, [], lambda: g.vm(f"buffer_store_dwordx2 v[{vM1}:{vM1+1}], v{vStSt}, s[{SWS}:{SWS+3}], 0 offen sc1", ev='clear0')))
    NR = 8
    poll1_chk = bar[opt.get('pa', 5)] - 8
    poll1b_chk = bar[opt.get('pb', 9)] - 8
    for ts in range(64):
        st = NUV + ts
        if ts >= NR - 1:
            ea = steps[st - (NR - 1)][2]
            if ts >= 32: assert ea > poll1b_chk + 2
        else:
            ea = max(poll1_chk + 2, steps[NUV - 1][2] - (NR - 1 - ts) * 16 - 64)
        for cb in range(2):
            b = 192 + 8 * (ts % NR) + 4 * cb
            pre = []
            if cb == 0 and ts > 0: pre.append(lambda: e(f"s_add_u32 s{sHsO}, s{sHsO}, 8192"))
            op = lambda b=b, ts=ts, cb=cb: g.vm(f"buffer_load_dwordx4 {ar(b,4)}, v{vHs}, s[{SWS}:{SWS+3}], s{sHsO} offen offset:{cb*1024} {TSC}", dst=R('a', b, 4), tag=('Hs', ts, cb))
            vq.append((ea + len(pre), steps[st][2] + cb * 0.1, pre, op, 'Hs'))

    XA = TMP + 32
    TT = TMP + 72
    XSL = opt.get("xs_load", [17, 47]); XSV = opt.get("xs_valu", [19, 49])
    for p in range(2):
        xs_start = steps[XSL[p]][2]
        for n in range(3):
            for ab in range(2):
                b = XA + 8 * n + 4 * ab
                v = vXsA if n < 2 else vXsA5
                pre = [lambda n=n, p=p: e(f"s_add_u32 s{sTX}, s{(sXsS, sXsS1)[p]}, {n*131072}")] if ab == 0 else []
                op = lambda b=b, v=v, n=n, ab=ab, p=p: g.vm(f"buffer_load_dwordx4 {vr(b,4)}, v{v}, s[{SX}:{SX+3}], s{sTX} offen offset:{ab*2048}", dst=R('v', b, 4), tag=('Xs', p, n, ab))
                vq.append((xs_start + len(pre), xs_start + opt.get('xs_dl', 60) + n + ab * 0.1, pre, op, 'Xs'))
    tcount = [0]
    def addpair(a, b, ta, tb, tres):
        t = TT + 4 * (tcount[0] & 1); tcount[0] += 1
        return [
            lambda: g.valu(f"v_lshlrev_b32 v{t}, 16, v{a}", reads=[(R('v', a, 1), ta)]),
            lambda: g.valu(f"v_lshlrev_b32 v{t+1}, 16, v{b}", reads=[(R('v', b, 1), tb)]),
            lambda: g.valu(f"v_and_b32 v{t+2}, 0xffff0000, v{a}", reads=[(R('v', a, 1), ta)]),
            lambda: g.valu(f"v_and_b32 v{t+3}, 0xffff0000, v{b}", reads=[(R('v', b, 1), tb)]),
            lambda: g.valu(f"v_add_f32 v{t}, v{t}, v{t+1}"),
            lambda: g.valu(f"v_add_f32 v{t+2}, v{t+2}, v{t+3}"),
            lambda: g.valu(f"v_cvt_pk_bf16_f32 v{a}, v{t}, v{t+2}", writes=R('v', a, 1), wtag=tres),
        ]
    SIG = opt.get("sig", [3, 7]); NOST = opt.get("nost", 0)
    for p in range(2):
        pre_store_evs = []
        cur = steps[XSV[p]][2]
        for n in range(3):
            ops = []
            for d in range(4):
                ops += addpair(XA + 8 * n + d, XA + 8 * n + 4 + d, ('Xs', p, n, 0), ('Xs', p, n, 1), ('XsR', p, n))
            cur = spread(ops, cur, stride=0)
            v = vXsD if n < 2 else vXsD5
            pre = [lambda n=n, p=p: e(f"s_add_u32 s{sP0}, s{sXsD}, {n*8192 + p*4*34816}")]
            op = lambda n=n, v=v, p=p: g.vm(f"buffer_store_dwordx4 {vr(XA+8*n,4)}, v{v}, s[{SWS}:{SWS+3}], s{sP0} offen {STSC}", reads=R('v', XA + 8 * n, 4), rtag=('XsR', p, n), ev=('XsSt', p, n))
            if NOST: op = lambda n=n, p=p: g.ev.__setitem__(('XsSt', p, n), g.vi)
            vq.append((cur + 2, cur + 30, pre, op)); pre_store_evs.append(('XsSt', p, n))
            cur += opt.get('xs_gap', 0)
        cur = max(cur, freed[('H', 2 * p + 1)] + 1)
        for cb in range(4):
            ops = []
            for d in range(4):
                ops += addpair(TMP + 4 * cb + d, TMP + 16 + 4 * cb + d, ('Hf', 2 * p, cb), ('Hf', 2 * p + 1, cb), ('HsR', p, cb))
            cur = spread(ops, cur, stride=0)
            so = sHst + 2 * p + (cb >> 1)
            op = lambda cb=cb, so=so, p=p: g.vm(f"buffer_store_dwordx4 {vr(TMP+4*cb,4)}, v{vHsSt}, s[{SWS}:{SWS+3}], s{so} offen offset:{(cb&1)*1024} {STSC}", reads=R('v', TMP + 4 * cb, 4), rtag=('HsR', p, cb), ev=('HsSt', p, cb))
            if NOST: op = lambda cb=cb, p=p: g.ev.__setitem__(('HsSt', p, cb), g.vi)
            vq.append((cur + 1, cur + 2, [], op)); pre_store_evs.append(('HsSt', p, cb))
            if cb < 3: cur += opt.get('hs_gap', 0)
        info_pre.append((p, cur, bar[SIG[p]]))
        bar_extra_vm[SIG[p]] += pre_store_evs + (['clear0'] if p == 0 else [])
        vq.append((bar[SIG[p]] + 1, bar[SIG[p]] + 2, [], lambda p=p: g.vm(f"buffer_store_dwordx2 {vr(vNon,2)}, v{vSig}, s[{SWS}:{SWS+3}], 0 offen offset:{8*p} sc1", reads=R('v', vNon, 2), rtag='non')))
    slow = []
    def check(name, load_txt, dst, ev1, ev2, br_fail, br_ok):
        def f1():
            g.need(R('v', dst, 2), name)
            for t in ev1: e(t)
        def f2():
            for t in ev2: e(t)
            e(f"{br_fail} L_slow_{name}"); g.out.append(f"L_back_{name}:")
        slow.append((name, load_txt, ev1, ev2, br_ok))
        return f1, f2
    def poll(nm, ld, chk_, lead):
        vq.append((chk_ - lead, chk_ - lead + 1, [], lambda: g.vm(ld, dst=R('v', vPoll, 2), tag=nm)))
        f1, f2 = check(nm, ld, vPoll, [f"v_cmp_ne_u64 vcc, s[{sNon}:{sNon+1}], {vr(vPoll,2)}"], [], "s_cbranch_vccnz", "s_cbranch_vccz")
        at(chk_ - 2, f1); at(chk_, f2)
    nchk = steps[opt.get("non", 13)][2]
    ldn = f"buffer_load_dwordx2 {vr(vNon,2)}, off, s[{SDBG}:{SDBG+3}], 0 sc1"
    vq.append((nchk - 100, nchk - 99, [], lambda: g.vm(ldn, dst=R('v', vNon, 2), tag='non')))
    f1, f2 = check('non', ldn, vNon, [f"v_readfirstlane_b32 s{sNon}, v{vNon}", f"v_readfirstlane_b32 s{sNon+1}, v{vNon+1}"], [f"s_cmp_lg_u32 s{sNon}, 0"], "s_cbranch_scc0", "s_cbranch_scc1")
    at(nchk - 2, f1); at(nchk, f2)
    for (nm, chk_, off) in (('p1', poll1_chk, 0), ('p1b', poll1b_chk, 8)):
        poll(nm, f"buffer_load_dwordx2 {vr(vPoll,2)}, v{vPl}, s[{SWS}:{SWS+3}], 0 offen offset:{off} sc1", chk_, opt.get('poll_lead', 100))
    if opt.get("tt", 1):
        for i in range(8, 16):
            if i < 10: ea = poll1_chk + 4 + (i - 8) * opt.get("tt_sp", 64)
            else: ea = P0[i - 2] + opt.get("tt_off", 8)
            if i >= 12: ea = max(ea, poll1b_chk + 4)
            pre = [lambda: e(f"v_add_u32 v{vTt}, v{vTi}, v{vTt}")] if i > 8 else []
            vq.append((ea, ea + 0.5, pre, lambda: g.vm(f"buffer_load_dword v{vTd}, v{vTt}, s[{SWS}:{SWS+3}], 0 offen {opt.get('ttsc', 'sc1')}"), 'TT'))

    RED = TMP; EF = 216; OP = 232; RC = WF0; SS = WF0
    def pwrite(acc_of, ev):
        ops = []
        for j in range(8):
            for c in range(2):
                a = acc_of(j, c)
                ops.append(lambda a=a, j=j, c=c: g.lg(f"ds_write_b128 v{vPW}, {ar(a,4)} offset:{(2*j+c)*1024}", ev=ev))
        return ops
    def pread(nm):
        ops = []
        for blk in range(4):
            for w2 in range(4):
                b = RED + 16 * w2 + 4 * blk
                v = vRed if w2 < 2 else vRed2
                off = (w2 & 1) * BRING + blk * 1024
                ops.append(lambda b=b, v=v, off=off, blk=blk, w2=w2: g.lg(f"ds_read_b128 {vr(b,4)}, v{v} offset:{off}", dst=R('v', b, 4), tag=(nm, blk, w2), ev=nm + 'r'))
        return ops
    def padd(nm, blk):
        ops = []
        for stage in range(3):
            for d in range(4):
                a0 = RED + 4 * blk + d
                if stage == 0: ops.append(lambda a0=a0: g.valu(f"v_add_f32 v{a0}, v{a0}, v{a0+16}", reads=[(R('v', a0, 1), (nm, blk, 0)), (R('v', a0 + 16, 1), (nm, blk, 1))]))
                elif stage == 1: ops.append(lambda a0=a0: g.valu(f"v_add_f32 v{a0+32}, v{a0+32}, v{a0+48}", reads=[(R('v', a0 + 32, 1), (nm, blk, 2)), (R('v', a0 + 48, 1), (nm, blk, 3))]))
                else: ops.append(lambda a0=a0: g.valu(f"v_add_f32 v{a0}, v{a0}, v{a0+32}", writes=R('v', a0, 1), wtag=(nm + 's', blk)))
        return ops
    spread(pwrite(lambda j, c: (j * 4 + 2 + c) * 4, 'Wf'), P0[8] + 6, stride=4, limit=bar[8] - 4)
    bar_extra_lg[8].append('Wf')
    cur = spread(pread('Rf'), bar[8] + 2, stride=3)
    cur += 8
    for blk in range(4):
        cur = spread(padd('Rf', blk), cur, stride=0)
        op = lambda blk=blk: g.vm(f"buffer_store_dwordx4 {vr(RED+4*blk,4)}, v{vRxSt}, s[{SWS}:{SWS+3}], 0 offen offset:{blk*1024} {RXSC}", reads=R('v', RED + 4 * blk, 4), rtag=('Rfs', blk), ev=('RxSt', blk))
        vq.append((cur + 1, cur + 2, [], op))
    assert cur < bar[9] - 8
    bar_extra_lg[9].append('Rfr')
    spread(pwrite(lambda j, c: (j * 4 + c) * 4, 'Wo'), bar[9] + 2, stride=4, limit=bar[10] - 4)
    bar_extra_lg[10].append('Wo')
    bar_extra_vm[10] += [('RxSt', b) for b in range(4)]
    vq.append((bar[10] + 1, bar[10] + 2, [], lambda: g.vm(f"buffer_store_dwordx2 {vr(vNon,2)}, v{vFlSt}, s[{SWS}:{SWS+3}], 0 offen sc1", reads=R('v', vNon, 2), rtag='non')))
    cur = spread(pread('Ro'), bar[10] + 2, stride=3)
    cur += 8
    for blk in range(4):
        cur = spread(padd('Ro', blk), cur, stride=0)
        cur = spread([lambda blk=blk: g.lg(f"ds_write_b128 v{vPW}, {vr(RED+4*blk,4)} offset:{16384+blk*1024}", reads=R('v', RED + 4 * blk, 4), rtag=('Ros', blk), ev='Wr')], cur + 1)
    assert cur < bar[11] - 4
    bar_extra_lg[11].append('Wr')
    ops = []
    for jj in range(2):
        for hf in range(2):
            ops.append(lambda jj=jj, hf=hf: g.lg(f"ds_read_b128 {vr(EF+8*jj+4*hf,4)}, v{vLE} offset:{jj*2048+hf*256}", dst=R('v', EF + 8 * jj + 4 * hf, 4), tag='LE'))
            ops.append(lambda jj=jj, hf=hf: g.lg(f"ds_read_b128 {vr(OP+8*jj+4*hf,4)}, v{(vLO0,vLO1)[jj]} offset:{hf*256}", dst=R('v', OP + 8 * jj + 4 * hf, 4), tag='LO'))
    for hf in range(2):
        ops.append(lambda hf=hf: g.lg(f"ds_read_b128 {vr(RED+4*hf,4)}, v{vLK} offset:{hf*256}", dst=R('v', RED + 4 * hf, 4), tag='LK'))
    ops.append(lambda: g.lg(f"ds_read_b32 v{vKc}, v{vLKc}", dst=R('v', vKc, 1), tag='LKc'))
    spread(ops, bar[11] + 2, stride=3)
    p2 = bar[12] + opt.get("p2", 0)
    c2 = p2 + 72
    poll('p2', f"buffer_load_dwordx2 {vr(vPoll,2)}, v{vFlP}, s[{SWS}:{SWS+3}], 0 offen sc1", c2, 72)
    k = 0
    for jj in range(2):
        for hf in range(2):
            vq.append((c2 + 1, c2 + 2 + k, [], lambda jj=jj, hf=hf: g.vm(f"buffer_load_dwordx4 {vr(RC+8*jj+4*hf,4)}, v{vGE}, s[{SWS}:{SWS+3}], 0 offen offset:{jj*2048+hf*256} sc1", dst=R('v', RC + 8 * jj + 4 * hf, 4), tag='GE'))); k += 8
            vq.append((c2 + 1, c2 + 2 + k, [], lambda jj=jj, hf=hf: g.vm(f"buffer_load_dwordx4 {vr(RC+16+8*jj+4*hf,4)}, v{(vGO0,vGO1)[jj]}, s[{SWS}:{SWS+3}], 0 offen offset:{hf*256} sc1", dst=R('v', RC + 16 + 8 * jj + 4 * hf, 4), tag='GO'))); k += 8
    for hf in range(2):
        vq.append((c2 + 1, c2 + 2 + k, [], lambda hf=hf: g.vm(f"buffer_load_dwordx4 {vr(RED+8+4*hf,4)}, v{vGK}, s[{SWS}:{SWS+3}], 0 offen offset:{hf*256} sc1", dst=R('v', RED + 8 + 4 * hf, 4), tag='GK'))); k += 8
    vq.append((c2 + 1, c2 + 2 + k, [], lambda: g.vm(f"buffer_load_dword v{vKc2}, v{vGKc}, s[{SWS}:{SWS+3}], 0 offen sc1", dst=R('v', vKc2, 1), tag='GKc')))
    ops = []
    for d in range(8):
        ops.append(lambda d=d: g.valu(f"v_add_f32 v{RED+d}, v{RED+d}, v{RED+8+d}", reads=[(R('v', RED + d, 1), 'LK'), (R('v', RED + 8 + d, 1), 'GK')], writes=R('v', RED + d, 1), wtag='K'))
    for d in range(16):
        ops.append(lambda d=d: g.valu(f"v_add_f32 v{EF+d}, v{EF+d}, v{RC+d}", reads=[(R('v', EF + d, 1), 'LE'), (R('v', RC + d, 1), 'GE')]))
        ops.append(lambda d=d: g.valu(f"v_sub_f32 v{OP+d}, -v{OP+d}, v{RC+16+d}", reads=[(R('v', OP + d, 1), 'LO'), (R('v', RC + 16 + d, 1), 'GO')]))
    for d in range(16):
        ops.append(lambda d=d: g.valu(f"v_sub_f32 v{EF+d}, v{EF+d}, v{RED+(d&7)}", reads=[(R('v', RED + (d & 7), 1), 'K')]))
        ops.append(lambda d=d: g.valu(f"v_sub_f32 v{OP+d}, v{OP+d}, v{RED+(d&7)}"))
    ops.append(lambda: g.valu(f"v_add_f32 v{vKc}, v{vKc}, v{vKc2}", reads=[(R('v', vKc, 1), 'LKc'), (R('v', vKc2, 1), 'GKc')]))
    ops.append(lambda: g.valu(f"v_lshlrev_b32 v{vBia}, 16, v{vBia}", reads=[(R('v', vBia, 1), 'bia')]))
    ops.append(lambda: g.valu(f"v_lshlrev_b32 v{vGam}, 16, v{vGam}", reads=[(R('v', vGam, 1), 'gam')]))
    ops.append(lambda: g.valu(f"v_lshlrev_b32 v{vBet}, 16, v{vBet}", reads=[(R('v', vBet, 1), 'bet')]))
    ops.append(lambda: g.valu(f"v_add_f32 v{vKc}, v{vKc}, v{vBia}"))
    for d in range(16):
        mk = sMask + 2 * (2 * (d >> 3))
        ops.append(lambda d=d, mk=mk: g.valu(f"v_cndmask_b32 v{EF+d}, 0, v{EF+d}, s[{mk}:{mk+1}]"))
    for d in range(8):
        ops.append(lambda d=d: g.valu(f"v_add_f32 v{SS+d}, v{EF+d}, v{EF+8+d}"))
        ops.append(lambda d=d: g.valu(f"v_mul_f32 v{SS+8+d}, v{EF+d}, v{EF+d}"))
    for d in range(8):
        ops.append(lambda d=d: g.valu(f"v_fmac_f32 v{SS+8+d}, v{EF+8+d}, v{EF+8+d}"))
    for d in range(2):
        ops.append(lambda d=d: g.valu(f"v_mov_b32 v{252+d}, 0x{f2u(c0):08x}"))
    comb_start = c2 + opt.get("comb", 150)

    vq = [t if len(t) == 5 else t + (None,) for t in vq]
    chain_next = defaultdict(int); seq = {}
    cnt = defaultdict(int)
    for n_, t in enumerate(vq):
        if t[4] is not None:
            seq[n_] = cnt[t[4]]; cnt[t[4]] += 1
    pending = sorted(range(len(vq)), key=lambda n_: (vq[n_][0], vq[n_][1]))
    cur = 0; lastg = -1
    while pending:
        win = [n_ for n_ in pending[:60] if vq[n_][4] is None or seq[n_] == chain_next[vq[n_][4]]]
        cands = [n_ for n_ in win if vq[n_][0] <= cur]
        if not cands:
            cur = max(cur + 1, min(vq[n_][0] for n_ in win)); continue
        n_ = min(cands, key=lambda n_: vq[n_][1])
        pending.remove(n_)
        ea, dl, pre, op, ch = vq[n_]
        if ch is not None: chain_next[ch] += 1
        gp = max(cur, lastg + 1 + len(pre))
        for k_, p in enumerate(pre):
            at(gp - len(pre) + k_, p)
        at(gp, op)
        lastg = gp
        cur = gp + (SP_UV if gp < P0[8] - 200 else SP_T)
    last = spread(ops, comb_start, stride=0)
    assert last < NM - 20, f"combine too late {last} {NM}"
    lastst = steps[-1][2]
    tw = pwrite(lambda j, c: 128 + (j * 2 + c) * 4, 'Wt')
    tail_w = []
    for k_, fn in enumerate(tw):
        gp = lastst + k_ + 9
        if gp < NM - 1: at(gp, fn)
        else: tail_w.append(fn)

    g.cur = -1
    g.mute = opt.get('mute', 0); g.mute_until = P0[8]
    g.wait(vm=g.ev[('A', 0, 8)])
    e("s_barrier")
    stamp('pro1')
    for u in range(8): af_read(0, u)()
    g.wait(vm=g.ev[(('B', 0), 3)])
    for fn in tr_reads(('B', 0)): fn()
    g.wait(lg=g.li)
    stamp('pro2')
    mi = 0
    maxload = 0
    for st, (i, m, g0) in enumerate(steps):
        n = PH_N[i]
        ncb = 4 if i < 8 else 2
        for j in range(8):
            for cc in range(ncb):
                cb = cc if j % 2 == 0 else ncb - 1 - cc
                k = af_slot[(i, j + m)]
                xb = AF0 + 4 * k
                g.need(R('v', xb, 4), ('F', i, j + m))
                if i < 8:
                    wb = WF0 + 16 * (st & 1) + 4 * cb
                    g.need(R('v', wb, 4), ('W', st, cb)); wtxt = vr(wb, 4)
                    d = (j * 4 + cb) * 4; first = (st == 0)
                else:
                    ts = st - NUV
                    wb = 192 + 8 * (ts % NR) + 4 * cb
                    g.need(R('a', wb, 4), ('Hs', ts, cb)); wtxt = ar(wb, 4)
                    d = 128 + (j * 2 + cb) * 4; first = (ts == 0)
                e(f"v_mfma_f32_16x16x32_bf16 {ar(d,4)}, {wtxt}, {vr(xb,4)}, {'0' if first else ar(d,4)}")
                g.cur = mi
                if cc == ncb - 1 and (j == 0 or m == n - 1):
                    free_af.append(k)
                maxload = max(maxload, len(gaps[mi]))
                for fn in gaps[mi]: fn()
                mi += 1
    assert mi == NM
    g.cur = NM; g.mute = 0
    stamp('end')
    e("s_nop 3")
    for fn in tail_w: fn()
    g.wait(lg=g.li)
    e("s_barrier")
    for fn in pread('Rt'): fn()
    O = OP
    for blk in range(4):
        for hp in range(2):
            a0 = RED + 4 * blk + 2 * hp
            g.valu(f"v_pk_add_f32 {vr(a0,2)}, {vr(a0,2)}, {vr(a0+16,2)}", reads=[(R('v', a0, 2), ('Rt', blk, 0)), (R('v', a0 + 16, 2), ('Rt', blk, 1))])
            g.valu(f"v_pk_add_f32 {vr(a0+32,2)}, {vr(a0+32,2)}, {vr(a0+48,2)}", reads=[(R('v', a0 + 32, 2), ('Rt', blk, 2)), (R('v', a0 + 48, 2), ('Rt', blk, 3))])
        for hp in range(2):
            a0 = RED + 4 * blk + 2 * hp; o = O + 4 * blk + 2 * hp
            e(f"v_pk_add_f32 {vr(o,2)}, {vr(o,2)}, {vr(a0,2)}")
        for hp in range(2):
            a0 = RED + 4 * blk + 2 * hp; o = O + 4 * blk + 2 * hp
            e(f"v_pk_add_f32 {vr(o,2)}, {vr(o,2)}, {vr(a0+32,2)}")
    for jj in range(2):
        mk = sMask + 2 * (2 * jj + 1)
        e(f"s_mov_b64 exec, s[{mk}:{mk+1}]")
        for hp in range(4):
            e(f"v_pk_add_f32 {vr(SS+2*hp,2)}, {vr(SS+2*hp,2)}, {vr(O+8*jj+2*hp,2)}")
            e(f"v_pk_fma_f32 {vr(SS+8+2*hp,2)}, {vr(O+8*jj+2*hp,2)}, {vr(O+8*jj+2*hp,2)}, {vr(SS+8+2*hp,2)}")
    e("s_mov_b64 exec, -1")
    e("s_nop 1")
    for k_ in range(8): e(f"v_add_f32_dpp v{SS+k_}, v{SS+k_}, v{SS+k_} row_ror:8 row_mask:0xf bank_mask:0x3")
    for k_ in range(8): e(f"v_add_f32_dpp v{SS+k_}, v{SS+8+k_}, v{SS+8+k_} row_ror:8 row_mask:0xf bank_mask:0xc")
    for k_ in range(4): e(f"v_add_f32_dpp v{SS+k_}, v{SS+k_}, v{SS+k_} row_half_mirror row_mask:0xf bank_mask:0x5")
    for k_ in range(4): e(f"v_add_f32_dpp v{SS+k_}, v{SS+4+k_}, v{SS+4+k_} row_half_mirror row_mask:0xf bank_mask:0xa")
    for k_ in range(4): e(f"v_add_f32_dpp v{SS+k_}, v{SS+k_}, v{SS+k_} quad_perm:[1,0,3,2] row_mask:0xf bank_mask:0xf")
    for k_ in range(4): e(f"v_add_f32_dpp v{SS+k_}, v{SS+k_}, v{SS+k_} quad_perm:[2,3,0,1] row_mask:0xf bank_mask:0xf")
    e("s_mov_b32 exec_lo, 0x11111111"); e("s_mov_b32 exec_hi, 0x11111111")
    g.lg(f"ds_write_b128 v{vSW}, {vr(SS,4)}")
    e("s_mov_b64 exec, -1")
    g.wait(lg=g.li)
    e("s_barrier")
    Q = RED
    for w2 in range(4):
        g.lg(f"ds_read2_b32 {vr(Q+2*w2,2)}, v{vSR} offset0:{w2*64} offset1:{w2*64+8}")
    g.wait(lg=g.li)
    e(f"v_pk_add_f32 {vr(Q,2)}, {vr(Q,2)}, {vr(Q+2,2)}")
    e(f"v_pk_add_f32 {vr(Q+4,2)}, {vr(Q+4,2)}, {vr(Q+6,2)}")
    e(f"v_pk_add_f32 {vr(Q,2)}, {vr(Q,2)}, {vr(Q+4,2)}")
    e(f"v_mul_f32 v{Q+2}, s{sInvN}, v{Q}")
    e(f"v_fma_f32 v{Q+5}, -v{Q}, v{Q+2}, v{Q+1}")
    e(f"v_add_f32 v{Q+4}, v{vKc}, v{Q+2}")
    e(f"v_max_f32 v{Q+5}, 0, v{Q+5}")
    g.vm(f"buffer_store_dwordx2 {vr(Q+4,2)}, v{vStSt}, s[{SWS}:{SWS+3}], 0 offen sc1")
    stamp('pub')
    Pp = RED + 8
    e(f"s_mov_b32 s{sP0}, 0x8000")
    g.out.append("L_poll3:")
    for u in range(4):
        e(f"buffer_load_dwordx2 {vr(Pp+2*u,2)}, v{vStP}, s[{SWS}:{SWS+3}], 0 offen offset:{u*256} sc1")
    e("s_waitcnt vmcnt(0)")
    e(f"v_max3_u32 v{Q}, v{Pp+1}, v{Pp+3}, v{Pp+5}")
    e(f"v_max_u32 v{Q}, v{Q}, v{Pp+7}")
    e(f"v_cmp_eq_u32 vcc, -1, v{Q}")
    e(f"s_sub_u32 s{sP0}, s{sP0}, 1")
    e("s_nop 3")
    e("s_cbranch_vccz L_got3")
    e(f"s_cmp_lg_u32 s{sP0}, 0")
    e("s_cbranch_scc1 L_poll3")
    g.out.append("L_got3:")
    stamp('got')
    e(f"v_add_f32 v{Q}, v{Pp}, v{Pp+2}")
    e(f"v_add_f32 v{Q}, v{Q}, v{Pp+4}")
    e(f"v_mul_f32 v{Q}, s{sC+4}, v{Q}")
    e(f"v_fmac_f32 v{Q}, v{vF3}, v{Pp+6}")
    e(f"v_add_f32 v{Q+2}, v{Pp+1}, v{Pp+3}")
    e(f"v_mov_b32 v{Q+1}, v{Q}")
    e(f"v_add_f32 v{Q+3}, v{Pp+5}, v{Pp+7}")
    e(f"v_add_f32 v{Q+2}, v{Q+2}, v{Q+3}")
    e(f"v_permlane32_swap_b32 v{Q}, v{Q+1}")
    e(f"v_mul_f32 v{Q+2}, s{sC+5}, v{Q+2}")
    e(f"v_add_f32 v{Q}, v{Q}, v{Q+1}")
    for u in range(4): e(f"v_sub_f32 v{Pp+2*u}, v{Pp+2*u}, v{Q}")
    e(f"v_mul_f32 v{Q+3}, v{Pp}, v{Pp}")
    e(f"v_fmac_f32 v{Q+3}, v{Pp+2}, v{Pp+2}")
    e(f"v_fmac_f32 v{Q+3}, v{Pp+4}, v{Pp+4}")
    e(f"v_mul_f32 v{Q+4}, v{vF3}, v{Pp+6}")
    e(f"v_fma_f32 v{Q+2}, s{sC+4}, v{Q+3}, v{Q+2}")
    e(f"v_fmac_f32 v{Q+2}, v{Q+4}, v{Pp+6}")
    e(f"v_sub_f32 v{Q+4}, v{vKc}, v{Q}")
    e(f"v_mov_b32 v{Q+3}, v{Q+2}")
    e("s_nop 1")
    e(f"v_permlane32_swap_b32 v{Q+2}, v{Q+3}")
    e(f"v_add_f32 v{Q+2}, v{Q+2}, v{Q+3}")
    e(f"v_add_f32 v{Q+2}, 0x{f2u(1e-5):08x}, v{Q+2}")
    e(f"v_rsq_f32 v{Q+2}, v{Q+2}")
    e("s_nop 0")
    e(f"v_mul_f32 v{Q+2}, v{vGam}, v{Q+2}")
    e(f"v_fma_f32 v{Q+3}, v{Q+4}, v{Q+2}, v{vBet}")
    e(f"ds_write2_b32 v{vABw}, v{Q+2}, v{Q+3} offset0:0 offset1:32")
    AA = RED + 16; BB = RED + 24
    e(f"ds_read_b128 {vr(AA,4)}, v{vABr}")
    e(f"ds_read_b128 {vr(AA+4,4)}, v{vABr} offset:16")
    e(f"ds_read_b128 {vr(BB,4)}, v{vABr} offset:128")
    e(f"ds_read_b128 {vr(BB+4,4)}, v{vABr} offset:144")
    e("s_waitcnt lgkmcnt(0)")
    U = RED + 32
    for (src, row) in ((EF, 0), (OP, 1), (EF + 8, 2), (OP + 8, 3)):
        u = U + 8 * (row & 1); pk = RED + 48 + 4 * row
        for hp in range(4): e(f"v_pk_fma_f32 {vr(src+2*hp,2)}, {vr(src+2*hp,2)}, {vr(AA+2*hp,2)}, {vr(BB+2*hp,2)}")
        for hp in range(4): e(f"v_pk_mul_f32 {vr(u+2*hp,2)}, {vr(src+2*hp,2)}, {vr(src+2*hp,2)}")
        for hp in range(4): e(f"v_pk_fma_f32 {vr(u+2*hp,2)}, {vr(u+2*hp,2)}, s[{sC}:{sC+1}], v[252:253]")
        for hp in range(4): e(f"v_pk_mul_f32 {vr(u+2*hp,2)}, {vr(u+2*hp,2)}, {vr(src+2*hp,2)}")
        for d in range(8): e(f"v_exp_f32 v{u+d}, v{u+d}")
        for hp in range(4): e(f"v_pk_add_f32 {vr(u+2*hp,2)}, {vr(u+2*hp,2)}, s[{sC+2}:{sC+3}]")
        for d in range(8): e(f"v_rcp_f32 v{u+d}, v{u+d}")
        for hp in range(4): e(f"v_pk_mul_f32 {vr(u+2*hp,2)}, {vr(u+2*hp,2)}, {vr(src+2*hp,2)}")
        for hp in range(4): e(f"v_cvt_pk_bf16_f32 v{pk+hp}, v{u+2*hp}, v{u+2*hp+1}")
        e(f"buffer_store_dwordx4 {vr(pk,4)}, v{vOut}, s[{SOUT}:{SOUT+3}], s{sOutO} offen offset:{row*1024}")
    if stamps:
        e("s_waitcnt vmcnt(0)")
        e(f"s_memtime s[{sXp}:{sXp+1}]".replace(f"s[{sXp}:{sXp+1}]", "s[34:35]"))
        e("s_memrealtime s[36:37]")
        e("s_waitcnt lgkmcnt(0)")
        nrec = 4 + nst[0]
        regs = [sStamp, sStamp + 2, 34, 36] + STR[:nst[0]]
        e(f"s_mul_i32 s3, s2, {8*nrec}"); e(f"s_add_u32 s3, s3, {WS_STAMP}")
        for k, r in enumerate(regs):
            e(f"v_mov_b32 v152, s{r}"); e(f"v_mov_b32 v153, s{r+1}")
            e(f"buffer_store_dwordx2 v[152:153], v{vAtom}, s[{SWS}:{SWS+3}], s3 offen offset:{8*k}")
            e("s_nop 1")
    e("s_branch L_end")
    for (name, ld, ev1, ev2, br_ok) in slow:
        g.out.append(f"L_slow_{name}:")
        e(f"s_mov_b32 s{sP1}, 0x8000")
        g.out.append(f"L_spin_{name}:")
        e(ld); e("s_waitcnt vmcnt(0)")
        for t in ev1: e(t)
        e("s_nop 3")
        for t in ev2: e(t)
        e(f"{br_ok} L_back_{name}")
        e("s_sleep 4")
        e(f"s_sub_u32 s{sP1}, s{sP1}, 1"); e(f"s_cmp_lg_u32 s{sP1}, 0"); e(f"s_cbranch_scc1 L_spin_{name}")
        e(f"s_branch L_back_{name}")
    g.out.append("L_end:")
    hdr = open("standalone__self_sup_conv_stem_hubert__speech.s.ref").read().split("\n")
    com = [l for l in hdr if l.startswith(";") and "@launch" not in l]
    txt = "\n".join(com) + f"\n; @launch grid=(256,1,1) block=(256,1,1) lds={LDS_TOTAL}\n"
    txt += f""".amdgcn_target "amdgcn-amd-amdhsa--gfx950"
.text
.globl {KN}
.p2align 8
.type {KN},@function
{KN}:
""" + "\n".join(g.out) + f"""
s_endpgm
.section .rodata,"a"
.p2align 6
.amdhsa_kernel {KN}
  .amdhsa_next_free_vgpr 512
  .amdhsa_next_free_sgpr 102
  .amdhsa_accum_offset 256
  .amdhsa_group_segment_fixed_size 0
  .amdhsa_kernarg_size 64
  .amdhsa_user_sgpr_count 2
  .amdhsa_user_sgpr_kernarg_segment_ptr 1
  .amdhsa_system_sgpr_workgroup_id_x 1
.end_amdhsa_kernel
"""
    info = dict(pre=info_pre, maxload=maxload, nwait=g.nwait, mind=g.mind, nst=nst[0], lines=len(g.out))
    return txt, info


import struct
def f2u(f): return struct.unpack("<I", struct.pack("<f", f))[0]


if __name__ == "__main__":
    import json
    name = sys.argv[1]
    opt = json.loads(sys.argv[2]) if len(sys.argv) > 2 else {}
    txt, info = generate(opt)
    open(name, "w").write(txt)
    print(name, info)
```
